```python
import torch

def _softmax(x, axis=-1):
    return torch.softmax(x, dim=axis)

def _gelu(x):
    return torch.nn.functional.gelu(x, approximate='tanh')

def _silu(x):
    return torch.nn.functional.silu(x)

def _sigmoid(x):
    return torch.sigmoid(x)

def _layernorm(x, axis=-1, eps=1e-05):
    m = x.mean(dim=axis, keepdim=True)
    v = x.var(dim=axis, keepdim=True, unbiased=False)
    return (x - m) / torch.sqrt(v + eps)

def _scatter_add(tgt, idx, src, axis=0):
    return tgt.clone().index_add_(axis, idx, src)

def _segment_sum(src, seg, n):
    out = torch.zeros((n,) + src.shape[1:], dtype=src.dtype)
    return out.index_add_(0, seg, src)

def _pad(x, pw):
    flat = tuple((v for pair in reversed(pw) for v in pair))
    return torch.nn.functional.pad(x, flat)
kernel_name = 'adaLN_cond__mha_block_cached__dense_activation_silu__prompt'

def setup_inputs():

    _w = lambda a: (lambda t: t.to(torch.bfloat16) if t.is_floating_point() else t)(torch.as_tensor(a))

    def _A_setup():
        B, Sq, D = (1, 2048, 640)
        H, Sk, Dh = (32, 2048, 128)
        return {'x': _w((lambda *s: torch.randn(*s, dtype=torch.bfloat16) * 0.1)(B, Sq, D)), 'k_cache': _w((lambda *s: torch.randn(*s, dtype=torch.bfloat16) * 0.8)(B, H, Sk, Dh)), 'v_cache': _w((lambda *s: torch.randn(*s, dtype=torch.bfloat16) * 3.2)(B, H, Sk, Dh)), 'wq': _w((lambda *s: torch.randn(*s, dtype=torch.bfloat16) * 0.8)(D, H * Dh) * D ** (-0.5)), 'wo': _w((lambda *s: torch.randn(*s, dtype=torch.bfloat16) * 3.2)(H * Dh, D) * (H * Dh) ** (-0.5))}
    _A_in = _A_setup()

    def _B_setup():
        B, S, D, F = (1, 2048, 640, 1728)
        return {'x': _w((lambda *s: torch.randn(*s, dtype=torch.bfloat16) * 0.1)(B, S, D)), 'w1': _w((lambda *s: torch.randn(*s, dtype=torch.bfloat16) * 3.2)(D, F) * D ** (-0.5)), 'w2': _w((lambda *s: torch.randn(*s, dtype=torch.bfloat16) * 3.2)(F, D) * F ** (-0.5))}
    _B_in = _B_setup()
    return {'A_x': _A_in['x'], 'A_k_cache': _A_in['k_cache'], 'A_v_cache': _A_in['v_cache'], 'A_wq': _A_in['wq'], 'A_wo': _A_in['wo'], 'B_x': _B_in['x'], 'B_w1': _B_in['w1'], 'B_w2': _B_in['w2'], 'c': _w((lambda *s: torch.randn(*s, dtype=torch.bfloat16) * 0.2)(1, 640) * 8.0), 'w_mod': _w((lambda *s: torch.randn(*s, dtype=torch.bfloat16) * 0.2)(640, 6 * 640) * 640 ** (-0.5) * 8.0)}

def reference(A_x, A_k_cache, A_v_cache, A_wq, A_wo, B_x, B_w1, B_w2, c, w_mod):

    def _A_ref(x, k_cache, v_cache, wq, wo):
        B, Sq, D = x.shape
        H, Dh = (32, 128)
        q = (lambda x, *d: x.permute(*d))((x @ wq).reshape(B, Sq, H, Dh), 0, 2, 1, 3)
        scores = torch.einsum('bhqd,bhkd->bhqk', q, k_cache) * Dh ** (-0.5)
        p = _softmax(scores, axis=-1)
        o = torch.einsum('bhqk,bhkd->bhqd', p, v_cache)
        return (lambda x, *d: x.permute(*d))(o, 0, 2, 1, 3).reshape(B, Sq, H * Dh) @ wo

    def _B_ref(x, w1, w2):
        h = torch.einsum('bsd,df->bsf', x, w1)
        h = _silu(h)
        out = torch.einsum('bsf,fd->bsd', h, w2)
        return out
    x = A_x
    mod = (_silu(c) @ w_mod).reshape(c.shape[0], 6, 1, -1)
    sa, ca, ga, sb, cb, gb = (mod[:, 0].clone(), mod[:, 1].clone(), mod[:, 2].clone(), mod[:, 3].clone(), mod[:, 4].clone(), mod[:, 5].clone())
    h = _layernorm(x, axis=-1) * (1 + ca) + sa
    x = x + ga * _A_ref(h, A_k_cache, A_v_cache, A_wq, A_wo)
    h = _layernorm(x, axis=-1) * (1 + cb) + sb
    x = x + gb * _B_ref(h, B_w1, B_w2)
    return x
```

```python
import re

REG_RE = re.compile(r'^(-|\|)?(abs\()?([vas])(\d+|\[(\d+):(\d+)\])\)?\|?$')


def regs_of(tok):
    tok = tok.strip()
    if tok in ('vcc', 'exec', 'm0', 'scc'):
        return [tok]
    if tok in ('vcc_lo', 'vcc_hi'):
        return ['vcc']
    if tok in ('exec_lo', 'exec_hi'):
        return ['exec']
    t = tok
    if t.startswith('-'):
        t = t[1:]
    if t.startswith('abs(') and t.endswith(')'):
        t = t[4:-1]
    if t.startswith('|') and t.endswith('|'):
        t = t[1:-1]
    m = re.match(r'^([vas])(\d+)$', t)
    if m:
        return [m.group(1) + m.group(2)]
    m = re.match(r'^([vas])\[(\d+):(\d+)\]$', t)
    if m:
        return [m.group(1) + str(i) for i in range(int(m.group(2)), int(m.group(3)) + 1)]
    return []


def split_ops(s):
    out, depth, cur = [], 0, ''
    for ch in s:
        if ch == '[' or ch == '(':
            depth += 1
        if ch == ']' or ch == ')':
            depth -= 1
        if ch == ',' and depth == 0:
            out.append(cur.strip())
            cur = ''
        else:
            cur += ch
    if cur.strip():
        out.append(cur.strip())
    return out


TRANS = ('v_exp_f32', 'v_log_f32', 'v_rcp_f32', 'v_rsq_f32', 'v_sqrt_f32', 'v_sin_f32', 'v_cos_f32',
         'v_rcp_iflag_f32')
NO_DST_S = ('s_waitcnt', 's_barrier', 's_nop', 's_branch', 's_cbranch', 's_setprio', 's_endpgm', 's_sleep',
            's_cmp', 's_bitcmp', 's_setreg', 's_sendmsg')


class Ins:
    __slots__ = ('text', 'op', 'kind', 'reads', 'writes', 'tag', 'dpp', 'passes', 'srcC', 'srcAB', 'wide_store',
                 'comment')

    def __init__(self, text, tag=None):
        self.text = text.strip()
        self.tag = tag
        self.reads, self.writes = set(), set()
        self.dpp = False
        self.passes = 0
        self.srcC = set()
        self.srcAB = set()
        self.wide_store = set()
        t = self.text
        if t.endswith(':') or t.startswith('.') or t.startswith(';') or t == '':
            self.op, self.kind = '', 'label' if t.endswith(':') else 'meta'
            return
        parts = t.split(None, 1)
        op = parts[0]
        self.op = op
        rest = parts[1] if len(parts) > 1 else ''
        rest = rest.split(';')[0]
        ops = split_ops(rest)
        mods = []
        if ops:
            toks = ops[-1].split()
            ops[-1] = toks[0] if toks else ''
            mods = toks[1:]
        R = [regs_of(o) for o in ops]
        base = re.sub(r'_(e32|e64|dpp|sdwa)$', '', op)
        if any(m.startswith(('row_', 'quad_perm', 'wave_')) for m in mods):
            self.dpp = True

        def rd(*idx):
            for i in idx:
                if i < len(R):
                    self.reads.update(R[i])

        def wr(*idx):
            for i in idx:
                if i < len(R):
                    self.writes.update(R[i])

        n = len(R)
        if op.startswith('v_mfma'):
            self.kind = 'mfma'
            self.passes = 8 if '32x32' in op else 4
            wr(0)
            rd(1, 2, 3)
            self.srcC = set(R[3])
            self.srcAB = set(R[1]) | set(R[2])
        elif op.startswith('v_'):
            self.kind = 'trans' if base in TRANS else 'valu'
            if base.startswith('v_cmpx'):
                wr(0)
                self.writes.add('exec')
                rd(*range(1, n))
            elif base.startswith('v_cmp'):
                wr(0)
                rd(*range(1, n))
            elif base.startswith('v_permlane') and 'swap' in base:
                self.kind = 'permlane'
                wr(0, 1)
                rd(0, 1)
            elif base in ('v_fmac_f32', 'v_dot2c_f32_bf16', 'v_pk_fmac_f16', 'v_writelane_b32'):
                wr(0)
                rd(*range(0, n))
            elif base in ('v_add_co_u32', 'v_sub_co_u32', 'v_addc_co_u32', 'v_subb_co_u32', 'v_subrev_co_u32',
                          'v_mad_u64_u32', 'v_div_scale_f32'):
                wr(0, 1)
                rd(*range(2, n))
            elif base in ('v_readfirstlane_b32', 'v_readlane_b32'):
                self.kind = 'readlane'
                wr(0)
                rd(*range(1, n))
            else:
                wr(0)
                rd(*range(1, n))
                if self.dpp:
                    rd(0)
            self.reads.add('exec')
        elif op.startswith('s_load') or op.startswith('s_buffer_load') or op.startswith('s_mem'):
            self.kind = 'smem'
            wr(0)
            rd(*range(1, n))
        elif op.startswith('s_'):
            self.kind = 'salu'
            if op.startswith('s_waitcnt'):
                self.kind = 'wait'
            elif op.startswith('s_barrier'):
                self.kind = 'barrier'
            elif op.startswith('s_nop'):
                self.kind = 'nop'
            elif op.startswith('s_branch') or op.startswith('s_cbranch') or op.startswith('s_endpgm'):
                self.kind = 'branch'
            elif op.startswith(NO_DST_S):
                rd(*range(0, n))
            else:
                wr(0)
                rd(*range(1, n))
                if 'saveexec' in op:
                    self.writes.add('exec')
                    self.reads.add('exec')
        elif op.startswith('ds_'):
            if op.startswith('ds_read') or op.startswith('ds_bpermute') or op.startswith('ds_swizzle') \
                    or op.startswith('ds_permute'):
                self.kind = 'dsread'
                wr(0)
                rd(*range(1, n))
            else:
                self.kind = 'dswrite'
                rd(*range(0, n))
        elif op.startswith('buffer_') or op.startswith('global_'):
            is_lds = 'lds' in mods or '_lds_' in op
            if is_lds:
                self.kind = 'dma'
                rd(*range(0, n))
                self.reads.add('m0')
            elif '_load' in op:
                self.kind = 'vload'
                wr(0)
                rd(*range(1, n))
            elif '_store' in op:
                self.kind = 'vstore'
                rd(*range(0, n))
                if op.endswith('x4') or op.endswith('x3'):
                    self.wide_store = set(R[0] if op.startswith('buffer') else R[1])
            elif '_atomic' in op:
                self.kind = 'vload' if 'sc0' in mods else 'vstore'
                rd(*range(0, n))
                if 'sc0' in mods:
                    wr(0)
            else:
                self.kind = 'vmisc'
        else:
            raise ValueError('unknown instruction: ' + t)

    def states(self):
        if self.kind in ('label', 'meta'):
            return 0
        if self.kind == 'nop':
            return int(self.text.split()[1], 0) + 1
        return 1


VM_KINDS = ('vload', 'vstore', 'dma', 'vmisc')
LGKM_KINDS = ('dsread', 'dswrite', 'smem')


class Asm:
    def __init__(self, auto_wait=True):
        self.ins = []
        self.vmq = []
        self.lgq = []
        self.auto_wait = auto_wait
        self.nwaits = 0

    def raw(self, text):
        self.ins.append(Ins(text))

    def label(self, name):
        self.ins.append(Ins(name + ':'))

    def comment(self, c):
        self.ins.append(Ins('; ' + c))

    def _need(self, q, regs):
        idx = -1
        for i, p in enumerate(q):
            if p.writes & regs:
                idx = i
        return idx

    def _emit_wait(self, vm=None, lg=None):
        s = 's_waitcnt'
        if vm is not None:
            assert 0 <= vm <= 63, vm
            s += f' vmcnt({vm})'
        if lg is not None:
            assert 0 <= lg <= 15, lg
            s += f' lgkmcnt({lg})'
        self.ins.append(Ins(s))
        self.nwaits += 1
        if vm is not None:
            self.vmq = self.vmq[len(self.vmq) - vm:] if vm < len(self.vmq) else self.vmq
            if vm == 0:
                self.vmq = []
        if lg is not None:
            if lg == 0:
                self.lgq = []
            elif lg < len(self.lgq):
                self.lgq = self.lgq[len(self.lgq) - lg:]

    def _lg_count(self, idx):
        if any(p.kind == 'smem' for p in self.lgq):
            return 0
        n = len(self.lgq) - 1 - idx
        return min(n, 15)

    def __call__(self, text, tag=None):
        for line in text.split('\n'):
            line = line.strip()
            if not line:
                continue
            i = Ins(line, tag)
            if i.kind in ('label', 'meta'):
                self.ins.append(i)
                continue
            if i.kind == 'wait':
                vm = re.search(r'vmcnt\((\d+)\)', line)
                lg = re.search(r'lgkmcnt\((\d+)\)', line)
                self._emit_wait(int(vm.group(1)) if vm else None, int(lg.group(1)) if lg else None)
                continue
            if self.auto_wait:
                regs = (i.reads | i.writes) - {'exec', 'scc'}
                iv = self._need(self.vmq, regs)
                il = self._need(self.lgq, regs)
                vm = lg = None
                if iv >= 0:
                    vm = min(len(self.vmq) - 1 - iv, 63)
                if il >= 0:
                    lg = self._lg_count(il)
                if vm is not None or lg is not None:
                    self._emit_wait(vm, lg)
            self.ins.append(i)
            if i.kind in VM_KINDS:
                self.vmq.append(i)
            elif i.kind in LGKM_KINDS:
                self.lgq.append(i)

    def wait_tag_vm(self, pred):
        idx = -1
        for i, p in enumerate(self.vmq):
            if p.tag is not None and pred(p.tag):
                idx = i
        if idx >= 0:
            self._emit_wait(vm=min(len(self.vmq) - 1 - idx, 63))

    def wait_tag_lg(self, pred):
        idx = -1
        for i, p in enumerate(self.lgq):
            if p.tag is not None and pred(p.tag):
                idx = i
        if idx >= 0:
            self._emit_wait(lg=self._lg_count(idx))

    def wait_regs(self, regs):
        s = set()
        for r in regs:
            s.update(regs_of(r))
        iv = self._need(self.vmq, s)
        il = self._need(self.lgq, s)
        vm = lg = None
        if iv >= 0:
            vm = min(len(self.vmq) - 1 - iv, 63)
        if il >= 0:
            lg = self._lg_count(il)
        if vm is not None or lg is not None:
            self._emit_wait(vm, lg)

    def wait_all(self, vm=True, lg=True):
        self._emit_wait(0 if vm else None, 0 if lg else None)

    def nop(self, n=1):
        while n > 0:
            k = min(n, 16)
            self.ins.append(Ins(f's_nop {k - 1}'))
            n -= k

    def mark(self, name):
        self.ins.append(Ins(f';@{name}'))

    def text(self):
        out = []
        for i in self.ins:
            if i.kind == 'label':
                out.append(i.text)
            else:
                out.append('    ' + i.text)
        return '\n'.join(out) + '\n'

    def check(self, verbose=True, start=0):
        ins = [i for i in self.ins[start:]]
        errs = []
        n = len(ins)
        WIN = 24
        for j in range(n):
            c = ins[j]
            if c.kind in ('label', 'meta', 'nop', 'wait', 'barrier'):
                continue
            dist = 0
            k = j - 1
            while k >= 0 and dist < WIN:
                p = ins[k]
                need = hazard(p, c)
                if need > dist:
                    errs.append((j, need, dist, p.text, c.text))
                dist += p.states()
                k -= 1
        if verbose:
            for e in errs[:40]:
                print('HAZARD need %d have %d:\n    %s\n    %s' % (e[1], e[2], e[3], e[4]))
        return errs


def is_valu(i):
    return i.kind in ('valu', 'trans', 'permlane', 'readlane')


def vregs(s):
    return {r for r in s if r[0] in 'va' and r not in ('vcc',)}


def sregs(s):
    return {r for r in s if (r[0] == 's' and r != 'scc') or r == 'vcc'}


def hazard(p, c):
    need = 0
    if p.kind == 'mfma':
        D = p.writes
        big = p.passes == 8
        if c.kind == 'mfma':
            if c.srcC & D:
                if c.srcC == D and c.passes == p.passes:
                    pass
                else:
                    need = max(need, 10 if big else 6)
            if c.srcAB & D:
                need = max(need, 12 if big else 8)
            if (c.writes & D) and not (c.srcC == D):
                if c.passes != p.passes:
                    need = max(need, 10 if big else 6)
        else:
            if (c.reads | c.writes) & D:
                need = max(need, 12 if big else 8)
        if is_valu(c) and (c.writes & p.srcC):
            need = max(need, 7 if big else 3)
    if is_valu(p):
        W = vregs(p.writes)
        if c.kind == 'mfma' and (c.reads & W):
            need = max(need, 2)
        if c.kind == 'permlane' and (c.reads & W):
            need = max(need, 2)
        if c.dpp and (c.reads & W):
            need = max(need, 2)
        if c.kind == 'readlane' and (c.reads & W):
            need = max(need, 1)
        if p.kind == 'trans' and is_valu(c) and c.kind != 'trans' and (c.reads & W):
            need = max(need, 1)
        if p.kind == 'trans' and c.kind == 'trans' and (c.reads & W):
            need = max(need, 1)
        S = sregs(p.writes)
        if S:
            if is_valu(c) and (c.reads & S):
                need = max(need, 4 if c.kind == 'readlane' else 2)
            if c.kind in VM_KINDS and (c.reads & S):
                need = max(need, 5)
            if c.kind == 'smem' and (c.reads & S):
                need = max(need, 4)
        if 'exec' in p.writes:
            if c.dpp:
                need = max(need, 5)
            if c.kind in ('mfma', 'permlane', 'readlane'):
                need = max(need, 4)
    if p.kind == 'salu' and 'm0' in p.writes and c.kind == 'dma':
        need = max(need, 1)
    if p.wide_store:
        if c.writes & p.wide_store:
            need = max(need, 2 if is_valu(c) else 1)
    return need


def _split_waits(group):
    out = []
    vm = lg = None
    for l in group:
        t = l.strip()
        if t.startswith('s_waitcnt'):
            m = re.search(r'vmcnt\((\d+)\)', t)
            if m:
                vm = int(m.group(1)) if vm is None else min(vm, int(m.group(1)))
            m = re.search(r'lgkmcnt\((\d+)\)', t)
            if m:
                lg = int(m.group(1)) if lg is None else min(lg, int(m.group(1)))
        else:
            out.append((vm, lg, l))
            vm = lg = None
    out.append((vm, lg, None))
    return out


def _merge(groups):
    sp = [_split_waits(g) for g in groups]
    out = []
    for items in zip(*sp):
        vms = [x[0] for x in items if x[0] is not None]
        lgs = [x[1] for x in items if x[1] is not None]
        if vms or lgs:
            s = '    s_waitcnt'
            if vms:
                s += f' vmcnt({min(vms)})'
            if lgs:
                s += f' lgkmcnt({min(lgs)})'
            out.append(s)
        if items[0][2] is not None:
            out.append(items[0][2])
    return out


def fold_loops(lines, prefix, counter_sreg, label):
    idx = [i for i, l in enumerate(lines) if l.strip().startswith(';@' + prefix)]
    groups = []
    for a, b in zip(idx[:-1], idx[1:]):
        groups.append(lines[a + 1:b])
    key = [[x[2] for x in _split_waits(g)] for g in groups]
    best = (0, 0)
    i = 0
    while i < len(groups):
        j = i
        while j + 1 < len(groups) and key[j + 1] == key[i]:
            j += 1
        if j - i + 1 > best[1]:
            best = (i, j - i + 1)
        i = j + 1
    s, cnt = best
    out = lines[:idx[0]]
    for g in range(len(groups)):
        if cnt > 1 and g == s:
            out.append(f'    s_mov_b32 {counter_sreg}, {cnt}')
            out.append(f'{label}:')
            out += _merge(groups[s:s + cnt])
            out.append(f'    s_sub_u32 {counter_sreg}, {counter_sreg}, 1')
            out.append(f'    s_cmp_lg_u32 {counter_sreg}, 0')
            out.append(f'    s_cbranch_scc1 {label}')
        elif cnt > 1 and s < g < s + cnt:
            continue
        else:
            out += groups[g]
    out += lines[idx[-1] + 1:]
    return out, (s, cnt, len(groups))
```

```python
import math, struct
from asmlib import *

KA_X, KA_K, KA_V, KA_WQ, KA_WO, KA_BX, KA_W1, KA_W2, KA_C, KA_WMOD, KA_OUT, KA_DBG, KA_WS = \
    [8 * i for i in range(13)]

WS_MOD = 0x0
WS_STATS = 0x4000
WS_UV = 0x24000
SZ_UV = 2 * 1728 * 4
WS_SYNC = 0x28000
SZ_SYNC = 4096
WS_XN = 0x40000
WS_Y = 0x300000
WS_X2 = 0x600000
WS_WOF = 0xB00000
WS_W1F = 0x1000000
WS_W2F = 0x1300000
WS_H = 0x1600000
WS_O = 0x2000000
WS_TS = 0x3000000

SZ_MOD = 3840 * 4
SZ_STATS = 2048 * 8 * 2 * 4
SZ_XN = 128 * 20 * 1024
SZ_Y = 128 * 20 * 1024
SZ_X2 = 2048 * 640 * 4
SZ_WOF = 40 * 128 * 1024
SZ_W1F = 108 * 20 * 1024
SZ_W2F = 40 * 54 * 1024
SZ_H = 128 * 54 * 1024
SZ_O = 128 * 128 * 1024

QSCALE = 128 ** -0.5 * math.log2(math.e)
LOG2E = math.log2(math.e)


def f32bits(x):
    return struct.unpack('<I', struct.pack('<f', x))[0]


def fhex(x):
    return '0x%08x' % f32bits(x)


def vr(b, n=1):
    return f'v{b}' if n == 1 else f'v[{b}:{b + n - 1}]'


def ar(b, n=1):
    return f'a{b}' if n == 1 else f'a[{b}:{b + n - 1}]'


def sr(b, n=1):
    return f's{b}' if n == 1 else f's[{b}:{b + n - 1}]'


def load_ptr(a, sdst, ka_off):
    a(f's_load_dwordx2 {sr(sdst, 2)}, s[0:1], {ka_off}')


def make_srd(a, srd, sptr, off, size, soff_extra=None):
    if off:
        a(f's_add_u32 s{srd}, s{sptr}, {hex(off)}')
        a(f's_addc_u32 s{srd + 1}, s{sptr + 1}, 0')
    else:
        a(f's_mov_b32 s{srd}, s{sptr}')
        a(f's_mov_b32 s{srd + 1}, s{sptr + 1}')
    if soff_extra is not None:
        a(f's_add_u32 s{srd}, s{srd}, {soff_extra}')
        a(f's_addc_u32 s{srd + 1}, s{srd + 1}, 0')
    a(f's_and_b32 s{srd + 1}, s{srd + 1}, 0xffff')
    a(f's_mov_b32 s{srd + 2}, {size if isinstance(size, str) else hex(size)}')
    a(f's_mov_b32 s{srd + 3}, 0x20000')


def kernel_header(name):
    return (f'.globl {name}\n.p2align 8\n.type {name},@function\n{name}:\n')


def kernel_desc(name, nvgpr, accum, nsgpr=96):
    return f'''.amdhsa_kernel {name}
  .amdhsa_next_free_vgpr {nvgpr}
  .amdhsa_next_free_sgpr {nsgpr}
  .amdhsa_accum_offset {accum}
  .amdhsa_group_segment_fixed_size 0
  .amdhsa_kernarg_size 104
  .amdhsa_user_sgpr_count 2
  .amdhsa_user_sgpr_kernarg_segment_ptr 1
  .amdhsa_system_sgpr_workgroup_id_x 1
  .amdhsa_float_denorm_mode_32 3
.end_amdhsa_kernel
'''


def sum_over_g(a, v, t):
    a(f'v_mov_b32 v{t}, v{v}')
    a.nop(2)
    a(f'v_permlane16_swap_b32 v{t}, v{v}')
    a(f'v_add_f32 v{v}, v{v}, v{t}')
    a(f'v_mov_b32 v{t}, v{v}')
    a.nop(2)
    a(f'v_permlane32_swap_b32 v{t}, v{v}')
    a(f'v_add_f32 v{v}, v{v}, v{t}')


def max_over_g(a, v, t):
    a(f'v_mov_b32 v{t}, v{v}')
    a.nop(2)
    a(f'v_permlane16_swap_b32 v{t}, v{v}')
    a(f'v_max_f32 v{v}, v{v}, v{t}')
    a(f'v_mov_b32 v{t}, v{v}')
    a.nop(2)
    a(f'v_permlane32_swap_b32 v{t}, v{v}')
    a(f'v_max_f32 v{v}, v{v}, v{t}')


def stamp(a, sbase, idx):
    pass
```

```python
from common import *

ATT_LDS = 163840
SB_OFF = 131072
FLAG_OFF = SB_OFF + 5120

S_K, S_V, S_W, S_X, S_O, S_M = 8, 12, 16, 20, 24, 28
S_WAVE, S_HEAD, S_QBLK, S_M0B = 32, 33, 34, 35
S_KOFF, S_CNT, S_TMP, S_MAX = 36, 38, 39, 37
S_XOFF = 44
S_WITEM, S_T1, S_T2, S_M0A, S_M0C = 48, 49, 50, 51, 52
S_ADJ = 53
S_TS = 60

V_XN = 128
V_H = 192
V_SB = 200
V_T = 232
V_WA = 236
V_WD, V_XA, V_SBA = 240, 241, 242
V_KD = 243
V_VD = 247
V_TID = 249
V_TMP = 250

V_S = 128
V_P = 144
V_E = 152
V_L = 160
V_KA = 164
V_VA = 168
V_X = 176

A_Q = 0
A_KF = 64
A_VF = 128
A_L = 192
A_ONE = 208
A_ZERO = 212


def O(qb, db):
    return (qb * 8 + db) * 4


def KF(par, kb, ds):
    return A_KF + par * 32 + (kb * 4 + ds) * 4


def WF(par, db):
    return A_KF + par * 32 + db * 4


def VF(par, db):
    return A_VF + par * 32 + db * 4


def QF(qb, ds):
    return A_Q + (qb * 4 + ds) * 4


def mfma(d, a_, b_, c):
    return f'v_mfma_f32_16x16x32_bf16 {d}, {a_}, {b_}, {c}'


class Stream:
    def __init__(self, a):
        self.a = a

    def run(self, slots):
        for m, fill in slots:
            if m is not None:
                self.a(m)
            for f in fill:
                if callable(f):
                    f()
                else:
                    self.a(f[0], tag=f[1]) if isinstance(f, tuple) else self.a(f)


def ts(a, cfg, idx):
    if cfg.get('ts'):
        a(f's_memtime s[{S_TS + 4 * idx}:{S_TS + 4 * idx + 1}]')
        a(f's_memrealtime s[{S_TS + 4 * idx + 2}:{S_TS + 4 * idx + 3}]')
        a('s_waitcnt lgkmcnt(0)')


def k_dma(j, tag):
    return (f'buffer_load_dwordx4 v{V_KD + j}, s[{S_K}:{S_K + 3}], s{S_TMP} offen offset:{1024 * j} lds', tag)


def v_dma(j, tag):
    return (f'buffer_load_dwordx4 v{V_VD + (j & 1)}, s[{S_V}:{S_V + 3}], s{S_TMP} offen offset:{1024 * j} lds', tag)


def slot_of(T):
    return (T + 1) % 4


def gen_setup(a, cfg):
    a('s_cmp_ge_u32 s2, 256')
    a('s_cbranch_scc1 L_attn_done')
    load_ptr(a, 4, KA_K)
    load_ptr(a, 6, KA_V)
    load_ptr(a, 40, KA_WQ)
    load_ptr(a, 42, KA_WS)
    a(f'v_mov_b32 v{V_TID}, v0')
    a(f'v_lshrrev_b32 v{V_TMP}, 6, v0')
    a('s_and_b32 s3, s2, 7')
    a('s_lshl_b32 s3, s3, 2')
    a(f's_bfe_u32 s{S_HEAD}, s2, 0x20003')
    a(f's_add_u32 s{S_HEAD}, s{S_HEAD}, s3')
    a(f's_lshr_b32 s{S_QBLK}, s2, 5')
    a(f'v_readfirstlane_b32 s{S_WAVE}, v{V_TMP}')
    a('s_waitcnt lgkmcnt(0)')
    a(f's_lshl_b32 s3, s{S_HEAD}, 19')
    make_srd(a, S_K, 4, 0, 524288, 's3')
    make_srd(a, S_V, 6, 0, 524288, 's3')
    a(f's_lshl_b32 s3, s{S_HEAD}, 8')
    a(f's_sub_u32 s{S_TMP}, {640 * 8192}, s3')
    make_srd(a, S_W, 40, 0, f's{S_TMP}', 's3')
    make_srd(a, S_X, 42, WS_XN, SZ_XN)
    make_srd(a, S_O, 42, WS_O, SZ_O)
    make_srd(a, S_M, 42, WS_MOD, SZ_MOD)
    a(f's_lshl_b32 s{S_M0B}, s{S_WAVE}, 12')
    T = V_TMP
    tid = V_TID
    a(f'v_lshlrev_b32 v{T}, 4, v{tid}')
    a(f'buffer_load_dwordx4 v[0:3], v{T}, s[{S_M}:{S_M + 3}], 0 offen', tag='mod')
    a(f'buffer_load_dwordx4 v[4:7], v{T}, s[{S_M}:{S_M + 3}], 0 offen offset:2560', tag='mod')
    a(f'v_and_b32 v8, 63, v{tid}')
    a('v_lshrrev_b32 v9, 4, v8')
    a('v_and_b32 v10, 15, v8')
    a(f's_lshl_b32 s3, s{S_WAVE}, 4')
    a('v_add_u32 v11, s3, v9')
    a('v_lshlrev_b32 v12, 2, v9')
    a('v_xor_b32 v12, v12, v10')
    a('v_lshlrev_b32 v12, 4, v12')
    a(f'v_lshl_add_u32 v{V_WD}, v11, 13, v12')
    item_dma_now(a, 0)
    a(f's_lshl_b32 s3, s{S_QBLK}, 4')
    a(f's_lshl_b32 s{S_TMP}, s{S_WAVE}, 2')
    a(f's_add_u32 s3, s3, s{S_TMP}')
    a('s_mul_i32 s3, s3, 20480')
    a('v_lshlrev_b32 v12, 4, v8')
    a(f'v_add_u32 v{V_XA}, s3, v12')
    for qb in range(4):
        a(f's_mov_b32 s{S_XOFF + qb}, {qb * 20480}')
    for U in range(4):
        a(xn_load(U), tag=('xn', U))
    item_dma_now(a, 1)
    for U in range(4, 16):
        a(xn_load(U), tag=('xn', U))
    for qb in range(4):
        a(f's_add_u32 s{S_XOFF + qb}, s{S_XOFF + qb}, 4096')
    for j in range(4):
        a(f'v_add_u32 v12, {4 * j}, v9')
        a('v_xor_b32 v12, v12, v10')
        a('v_lshlrev_b32 v12, 4, v12')
        a(f'v_lshl_add_u32 v{V_KD + j}, v11, 8, v12')
    for j in range(2):
        a(f'v_add_u32 v12, {4 * j}, v9')
        a('v_lshlrev_b32 v12, 1, v12')
        a('v_xor_b32 v12, v12, v10')
        a('v_lshlrev_b32 v12, 4, v12')
        a(f'v_lshl_add_u32 v{V_VD + j}, v11, 8, v12')
    a(f's_cmp_ge_u32 s{S_WAVE}, 2')
    a(f's_cselect_b32 s{S_ADJ}, 8192, 0')
    a(f's_sub_u32 s{S_MAX}, {524288 - 4096}, s{S_M0B}')
    a(f's_mov_b32 m0, s{S_M0B}')
    for j in range(4):
        a(f'v_subrev_u32 v{12 + j}, s{S_ADJ}, v{V_KD + j}')
    for j in range(4):
        a(f'buffer_load_dwordx4 v{12 + j}, s[{S_K}:{S_K + 3}], 0 offen offset:{1024 * j} lds', tag=('K', -1))
    a(f's_add_u32 m0, s{S_M0B}, {16384 * slot_of(0)}')
    a(f's_movk_i32 s{S_TMP}, 8192')
    for j in range(4):
        a(*k_dma(j, ('K', 0)))
    a('v_lshrrev_b32 v12, 2, v10')
    a('v_lshl_add_u32 v13, v9, 3, v12')
    a('v_lshlrev_b32 v13, 8, v13')
    a('v_and_b32 v14, 3, v10')
    a('v_lshl_add_u32 v13, v14, 4, v13')
    a('v_add_u32 v13, 98304, v13')
    for ds in range(4):
        a(f'v_xor_b32 v14, {ds}, v12')
        a(f'v_lshl_add_u32 v{V_WA + ds}, v14, 6, v13')
    a(f'v_lshlrev_b32 v{V_SBA}, 5, v9')
    a(f'v_add_u32 v{V_SBA}, {SB_OFF}, v{V_SBA}')
    for e in range(4):
        a(f'v_add_f32 v{4 + e}, 1.0, v{4 + e}')
    a('v_cvt_pk_bf16_f32 v12, v4, v5')
    a('v_cvt_pk_bf16_f32 v13, v6, v7')
    a('v_lshlrev_b32 v4, 16, v12')
    a('v_and_b32 v5, 0xffff0000, v12')
    a('v_lshlrev_b32 v6, 16, v13')
    a('v_and_b32 v7, 0xffff0000, v13')
    for e in range(4):
        a(f'v_mul_f32 v{e}, {fhex(QSCALE)}, v{e}')
    a(f'v_lshlrev_b32 v12, 4, v{tid}')
    a(f'v_add_u32 v12, {SB_OFF}, v12')
    a(f'v_cmp_gt_u32 vcc, 160, v{tid}')
    a('s_and_saveexec_b64 s[54:55], vcc')
    a('ds_write_b128 v12, v[4:7]')
    a('ds_write_b128 v12, v[0:3] offset:2560')
    a('s_mov_b64 exec, s[54:55]')
    for r in range(32):
        a(f'v_accvgpr_write_b32 a{VF(1, 0) + r}, 0')
    for r in range(4):
        a(f'v_accvgpr_write_b32 a{A_ZERO + r}, 0')
    a(f'v_mov_b32 v12, 0x3f803f80')
    for r in range(4):
        a(f'v_accvgpr_write_b32 a{A_ONE + r}, v12')
    for r in range(16):
        a(f'v_accvgpr_write_b32 a{A_L + r}, 0')
    for r in range(128):
        a(f'v_mov_b32 v{r}, 0')
    a(f's_add_u32 s{S_M0A}, s{S_M0B}, {65536 + 16384}')
    a(f's_add_u32 s{S_M0C}, s{S_M0B}, {65536 + 32768}')
    a(f's_mov_b32 s{S_WITEM}, {3 * 524288}')


def xn_load(U):
    kap, qb = U // 4, U % 4
    r = V_XN + (U % 16) * 4
    return (f'buffer_load_dwordx4 v[{r}:{r + 3}], v{V_XA}, s[{S_X}:{S_X + 3}], s{S_XOFF + qb} offen '
            f'offset:{(kap & 3) * 1024}')


def item_dma_now(a, c):
    a(f's_add_u32 m0, s{S_M0B}, {65536 + ((c + 2) % 4) * 16384}')
    for j in range(4):
        a(f's_mov_b32 s{S_T1}, {c * 524288 + j * 31744}')
        a(f'buffer_load_dwordx4 v{V_WD}, s[{S_W}:{S_W + 3}], s{S_T1} offen offset:{1024 * j} lds', tag=('item', c))


def wf_reads(kap):
    out = []
    c = kap // 2
    for db in range(8):
        ds, e = db >> 1, db & 1
        for sel in range(2):
            off = (c & 1) * 16384 + (kap & 1) * 8192 + sel * 1024 + e * 8
            r = WF(kap & 1, db) + 2 * sel
            out.append(f'ds_read_b64_tr_b16 a[{r}:{r + 1}], v{V_WA + ds} offset:{off}')
    return out


def sb_reads(kap):
    base = V_SB + (kap & 1) * 16
    o = (kap & 3) * 128
    return [f'ds_read_b128 v[{base}:{base + 3}], v{V_SBA} offset:{o}',
            f'ds_read_b128 v[{base + 8}:{base + 11}], v{V_SBA} offset:{o + 2560}',
            f'ds_read_b128 v[{base + 4}:{base + 7}], v{V_SBA} offset:{o + 16}',
            f'ds_read_b128 v[{base + 12}:{base + 15}], v{V_SBA} offset:{o + 2576}']


def mod_x(U, el):
    kap = U // 4
    x = V_XN + (U % 16) * 4 + (el >> 1)
    sb = V_SB + (kap & 1) * 16
    t = V_T + ((el >> 1) & 1) * 2 + (el & 1)
    return (f'v_fma_mix_f32 v{t}, v{x}, v{sb + el}, v{sb + 8 + el} op_sel:[{el & 1},0,0] op_sel_hi:[1,0,0]')


def mod_c(U, d):
    t = V_T + (d & 1) * 2
    return f'v_cvt_pk_bf16_f32 v{V_H + (U & 1) * 4 + d}, v{t}, v{t + 1}'


def kf_reads(u):
    T, half = (u - 1) // 2, (u - 1) & 1
    out = []
    for kb in range(2):
        for ds in range(4):
            off = slot_of(T) * 16384 + (32 * half + 16 * kb) * 256
            r = KF(u & 1, kb, ds)
            out.append(f'ds_read_b128 a[{r}:{r + 3}], v{V_KA + ds} offset:{off}')
    return out


def vf_reads(u):
    T, half = (u - 1) // 2, (u - 1) & 1
    out = []
    for db in range(8):
        for sel in range(2):
            off = slot_of(T) * 16384 + (32 * half + 16 * sel) * 256
            r = VF(u & 1, db) + 2 * sel
            out.append(f'ds_read_b64_tr_b16 a[{r}:{r + 1}], v{V_VA + db} offset:{off}')
    return out


def gen_qproj(a, cfg):
    st = Stream(a)
    a.wait_tag_vm(lambda t: t == ('item', 0))
    a('s_waitcnt lgkmcnt(0)')
    a('s_barrier')
    a(f's_add_u32 m0, s{S_M0B}, {65536 + 0 * 16384}')
    for j in range(4):
        a(f's_mov_b32 s{S_T1}, {2 * 524288 + j * 31744}')
        a(f'buffer_load_dwordx4 v{V_WD}, s[{S_W}:{S_W + 3}], s{S_T1} offen offset:{1024 * j} lds', tag=('item', 2))
    for r in sb_reads(0):
        a(r)
    for r in wf_reads(0):
        a(r)
    for d in range(4):
        a(mod_x(0, 2 * d))
        a(mod_x(0, 2 * d + 1))
        a(mod_c(0, d))
    a(mod_x(1, 0))
    a(mod_x(1, 1))
    a.wait_regs([f'a[{WF(0, 0)}:{WF(0, 0) + 31}]'])
    ts(a, cfg, 1)
    for kap in range(20):
        if kap % 4 == 0:
            a.mark(f'qp{kap // 4}')
        if kap < 19:
            rd = wf_reads(kap + 1)
        else:
            rd = kf_reads(0) + vf_reads(0)
        sbr = sb_reads(kap + 1) if kap < 19 else []
        c = (kap + 1) // 2
        dma = []
        pre = []
        if kap % 2 == 1:
            item = c + 2
            if kap < 19:
                pre.append(lambda c=c: a.wait_tag_vm(lambda t: t == ('item', c)))
            else:
                pre.append(lambda: a.wait_tag_vm(lambda t: t in (('K', -1), ('V', -1))))
            pre.append('s_barrier')
            if kap % 4 == 3 and kap < 19:
                pre.append(f'v_add_u32 v{V_SBA}, 512, v{V_SBA}')
                for ds in range(4):
                    pre.append(f'v_xor_b32 v{V_WA + ds}, 0x8000, v{V_WA + ds}')
            if kap == 19:
                pass
            if item <= 9:
                m0s = S_M0A if kap % 4 == 1 else S_M0C
                for j in range(4):
                    dma.append(([f's_mov_b32 m0, s{m0s}'] if j == 0 else []) +
                               [f's_add_u32 s{S_T1}, s{S_WITEM}, {j * 31744}'] +
                               [(f'buffer_load_dwordx4 v{V_WD}, s[{S_W}:{S_W + 3}], s{S_T1} offen '
                                 f'offset:{1024 * j} lds', ('item', item))] +
                               ([f's_add_u32 s{S_WITEM}, s{S_WITEM}, 524288'] if j == 3 else []))
            elif item == 10:
                for j in range(4):
                    dma.append(([f's_add_u32 m0, s{S_M0B}, 65536'] if j == 0 else []) +
                               [f'v_subrev_u32 v{V_TMP}, s{S_ADJ}, v{V_VD + (j & 1)}',
                                (f'buffer_load_dwordx4 v{V_TMP}, s[{S_V}:{S_V + 3}], 0 offen offset:{1024 * j} lds',
                                 ('V', -1))])
            elif item == 11:
                for j in range(4):
                    dma.append(([f's_add_u32 m0, s{S_M0B}, {65536 + slot_of(0) * 16384}',
                                 f's_movk_i32 s{S_TMP}, 8192'] if j == 0 else []) + [v_dma(j, ('V', 0))])
            elif item == 12:
                for j in range(4):
                    dma.append(([f's_add_u32 m0, s{S_M0B}, {slot_of(1) * 16384}',
                                 f's_movk_i32 s{S_TMP}, {8192 + 16384}'] if j == 0 else []) + [k_dma(j, ('K', 1))])
                for j in range(4):
                    dma.append(([f's_add_u32 m0, s{S_M0B}, {65536 + slot_of(1) * 16384}', 's_nop 0'] if j == 0 else []) +
                               [v_dma(j, ('V', 1))])
        if kap == 19:
            gen_attn_addrs(a)
        nrd = len(rd)
        for qb in range(4):
            U = 4 * kap + qb
            B = vr(V_H + (U & 1) * 4, 4)
            gaps = [[] for _ in range(8)]
            have1 = U + 1 < 80
            have2 = U + 2 < 80
            cut = [0, 4, 8, 14, 16] if nrd == 16 else [0, 7, 14, 21, 24]
            my_rd = rd[cut[qb]:cut[qb + 1]]
            order = [0, 2, 4, 6, 1, 3, 5] if qb < 3 else [0, 1, 2]
            for n_, r in enumerate(my_rd):
                gaps[order[n_]].append(r)
            if qb < 2:
                for r in sbr[2 * qb:2 * qb + 2]:
                    gaps[1 + 2 * (sbr.index(r) & 1)].append(r)
            if dma:
                nd = len(dma) // 4
                for dd in dma[qb * nd:(qb + 1) * nd]:
                    gaps[5].extend(dd)
            if U + 16 < 80:
                gaps[7].append((xn_load(U + 16), ('xn', U + 16)))
            if have1:
                gaps[0].append(mod_c(U + 1, 0))
                gaps[1] += [mod_x(U + 1, 2), mod_x(U + 1, 3)]
                gaps[2].append(mod_c(U + 1, 1))
                gaps[3] += [mod_x(U + 1, 4), mod_x(U + 1, 5)]
                gaps[4].append(mod_c(U + 1, 2))
                gaps[5] += [mod_x(U + 1, 6), mod_x(U + 1, 7)]
                gaps[6].append(mod_c(U + 1, 3))
            if have2:
                gaps[7] += [mod_x(U + 2, 0), mod_x(U + 2, 1)]
            elif have1:
                gaps[7].append('s_nop 1')
            if qb == 0:
                gaps[0] = pre + gaps[0]
                a.wait_regs([f'a[{WF(kap & 1, 0)}:{WF(kap & 1, 0) + 31}]'])
            slots = []
            for db in range(8):
                d = vr(O(qb, db), 4)
                slots.append((mfma(d, ar(WF(kap & 1, db), 4), B, d), gaps[db]))
            st.run(slots)
        if kap % 4 == 3:
            for qb in range(4):
                a(f's_add_u32 s{S_XOFF + qb}, s{S_XOFF + qb}, 4096')
            a(f's_xor_b32 s{S_M0A}, s{S_M0A}, 32768')
            a(f's_xor_b32 s{S_M0C}, s{S_M0C}, 32768')
    a.mark('qpend')


def gen_attn_addrs(a):
    t = V_TMP
    a(f'v_and_b32 v{t}, 15, v{V_TID}')
    a(f'v_bfe_u32 v{t + 1}, v{V_TID}, 4, 2')
    for ds in range(4):
        a(f'v_add_u32 v{t + 2}, {4 * ds}, v{t + 1}')
        a(f'v_xor_b32 v{t + 2}, v{t + 2}, v{t}')
        a(f'v_lshlrev_b32 v{t + 2}, 4, v{t + 2}')
        a(f'v_lshl_add_u32 v{V_KA + ds}, v{t}, 8, v{t + 2}')
    a(f'v_lshrrev_b32 v{t + 2}, 2, v{t}')
    a(f'v_lshl_add_u32 v{t + 2}, v{t + 1}, 2, v{t + 2}')
    a(f'v_and_b32 v{t + 3}, 7, v{t + 2}')
    a(f'v_lshlrev_b32 v{t + 2}, 8, v{t + 2}')
    a(f'v_and_b32 v{t + 4}, 3, v{t}')
    a(f'v_lshl_add_u32 v{t + 2}, v{t + 4}, 3, v{t + 2}')
    a(f'v_add_u32 v{t + 2}, 65536, v{t + 2}')
    for db in range(8):
        a(f'v_xor_b32 v{t + 4}, {db}, v{t + 3}')
        a(f'v_lshl_add_u32 v{V_VA + db}, v{t + 4}, 5, v{t + 2}')


def gen_p2(a, cfg):
    a.nop(8)
    t = V_X
    for qb in range(4):
        for ds in range(4):
            for d in range(4):
                src = O(qb, 2 * ds + (d >> 1)) + 2 * (d & 1)
                a(f'v_cvt_pk_bf16_f32 v{t + (d & 1)}, v{src}, v{src + 1}')
                a(f'v_accvgpr_write_b32 a{QF(qb, ds) + d}, v{t + (d & 1)}')
        z = ar(A_ZERO, 4)
        for hh in range(2):
            b = O(qb, 4 * hh)
            a(f'v_mfma_f32_32x32x16_bf16 v[{b}:{b + 15}], {z}, {z}, 0')
    for r in range(8):
        a(f'v_mov_b32 v{V_P + r}, 0')
    for r in range(4):
        a(f'v_mov_b32 v{V_L + r}, 0')
    a(f's_mov_b32 s{S_KOFF}, {2 * 16384 + 8192}')


def qk_slots(n):
    u, qb = n // 4, n % 4
    out = []
    for kb in range(2):
        d = vr(V_S + (n & 1) * 8 + kb * 4, 4)
        ch = []
        for ds in range(4):
            ch.append(mfma(d, ar(KF(u & 1, kb, ds), 4), ar(QF(qb, ds), 4), '0' if ds == 0 else d))
        out.append(ch)
    return out


def pv_slots(n):
    u, qb = n // 4, n % 4
    B = vr(V_P + (n & 1) * 4, 4)
    return [mfma(vr(O(qb, db), 4), ar(VF(u & 1, db), 4), B, vr(O(qb, db), 4)) for db in range(8)]


def l_slot(n):
    qb = n % 4
    d = ar(A_L + qb * 4, 4)
    return mfma(d, ar(A_ONE, 4), vr(V_P + (n & 1) * 4, 4), d)


def gen_main(a, cfg):
    lmode = cfg.get('lmode', 'add')
    st = Stream(a)
    a.wait_regs([f'a[{KF(0, 0, 0)}:{KF(0, 0, 0) + 31}]'])
    q = qk_slots(0)
    for m in q[0] + q[1]:
        a(m)
    a.nop(2)
    ts(a, cfg, 2)
    for n in range(256):
        s, qi = n // 4, n % 4
        if n % 32 == 0:
            a.mark(f'grp{n // 32}')
        T = s // 2
        kr = kf_reads(s + 1)
        vrd = vf_reads(s + 1)
        rd = {0: kr[0:6], 1: kr[6:8] + vrd[0:4], 2: vrd[4:10], 3: vrd[10:16]}[qi]
        p = n % 8
        T2 = T + 2
        pre_dma = []
        if p == 0:
            pre_dma = [f's_min_u32 s{S_TMP}, s{S_KOFF}, s{S_MAX}',
                       f's_add_u32 m0, s{S_M0B}, {slot_of(T2) * 16384}']
        elif p == 4:
            pre_dma = [f's_add_u32 m0, s{S_M0B}, {65536 + slot_of(T2) * 16384}']
        dma = k_dma(p, ('K', T2)) if p < 4 else v_dma(p - 4, ('V', T2))
        qk = qk_slots(n + 1)
        pv = pv_slots(n - 1)
        ms = qk[0] + pv[0:4] + qk[1] + pv[4:8]
        gaps = [[] for _ in range(17)]
        E = V_E
        S = V_S + (n & 1) * 8
        P = V_P + (n & 1) * 4
        qb = n % 4
        for j in range(8):
            gaps[2 * j].append(f'v_exp_f32 v{E + j}, v{S + j}')
        if lmode == 'add':
            pos = {0: 1, 1: 1, 2: 5, 3: 5, 4: 9, 5: 9}
            for k, r in enumerate(rd):
                gaps[pos[k]].append(r)
            gaps[13].append(dma)
            for j in range(8):
                gaps[2 * j + 1].append(f'v_add_f32 v{V_L + qb}, v{E + j}, v{V_L + qb}')
            for d in range(4):
                gaps[4 * d + 3].append(f'v_cvt_pk_bf16_f32 v{P + d}, v{E + 2 * d}, v{E + 2 * d + 1}')
        else:
            pos = {0: 1, 1: 1, 2: 5, 3: 5, 4: 9, 5: 9}
            for k, r in enumerate(rd):
                gaps[pos[k]].append(r)
            gaps[13].append(dma)
            for d in range(4):
                gaps[4 * d + 3].append(f'v_cvt_pk_bf16_f32 v{P + d}, v{E + 2 * d}, v{E + 2 * d + 1}')
        if p == 0:
            gaps[0] = [lambda T=T: a.wait_tag_vm(lambda t: t in (('K', T), ('V', T))), 's_barrier'] + gaps[0]
        if pre_dma:
            gaps[10] = [pre_dma[0]] + gaps[10]
            if len(pre_dma) > 1:
                gaps[12] = [pre_dma[1]] + gaps[12]
        if p == 7:
            gaps[14] = [f's_add_u32 s{S_KOFF}, s{S_KOFF}, 16384'] + gaps[14]
        slots = [(ms[k], gaps[k]) for k in range(16)]
        if lmode != 'add':
            slots.insert(8, (l_slot(n - 1), []))
        if qi == 3:
            a.wait_regs([f'a[{KF((s + 1) & 1, 0, 0)}:{KF((s + 1) & 1, 0, 0) + 31}]'])
        if qi == 1:
            m0_, g0_ = slots[3]
            slots[3] = (m0_, list(g0_) + [lambda s=s: a.wait_regs([f'a[{VF(s & 1, 0)}:{VF(s & 1, 0) + 31}]'])])
        st.run(slots)
    a.mark('grpend')
    a.nop(2)
    for m in pv_slots(255):
        a(m)
    if lmode != 'add':
        a(l_slot(255))


def gen_epilogue(a, cfg):
    lmode = cfg.get('lmode', 'add')
    t = V_X
    a.wait_all()
    a.nop(8)
    for qb in range(4):
        if lmode == 'add':
            sum_over_g(a, V_L + qb, t)
        else:
            a(f'v_accvgpr_read_b32 v{V_L + qb}, a{A_L + qb * 4}')
    a(f'v_min_f32 v{t}, v{V_L}, v{V_L + 1}')
    a(f'v_min_f32 v{t + 1}, v{V_L + 2}, v{V_L + 3}')
    a(f'v_min_f32 v{t}, v{t}, v{t + 1}')
    a(f'v_max_f32 v{t + 1}, v{V_L}, v{V_L + 1}')
    a(f'v_max3_f32 v{t + 1}, v{V_L + 2}, v{V_L + 3}, v{t + 1}')
    for qb in range(4):
        a(f'v_rcp_f32 v{V_L + qb}, v{V_L + qb}')
    a(f'v_and_b32 v{t + 2}, 63, v{V_TID}')
    a(f'v_lshlrev_b32 v{t + 2}, 4, v{t + 2}')
    a(f's_lshl_b32 s3, s{S_QBLK}, 4')
    a(f's_lshl_b32 s{S_TMP}, s{S_WAVE}, 2')
    a(f's_add_u32 s3, s3, s{S_TMP}')
    a('s_lshl_b32 s3, s3, 17')
    a(f's_lshl_b32 s{S_TMP}, s{S_HEAD}, 12')
    a(f's_add_u32 s3, s3, s{S_TMP}')
    ts(a, cfg, 3)
    for qb in range(4):
        a(f's_add_u32 s{S_T1}, s3, {qb * 131072}')
        for m in range(4):
            b = O(qb, 2 * m)
            dst = t + 4 + (m & 1) * 4
            for e in range(8):
                a(f'v_mul_f32 v{b + e}, v{b + e}, v{V_L + qb}')
            for d in range(4):
                a(f'v_cvt_pk_bf16_f32 v{dst + d}, v{b + 2 * d}, v{b + 2 * d + 1}')
            a(f'buffer_store_dwordx4 v[{dst}:{dst + 3}], v{t + 2}, s[{S_O}:{S_O + 3}], s{S_T1} offen offset:{1024 * m}')


def gen_ts_store(a, cfg, n):
    if not cfg.get('ts'):
        return
    a.wait_all()
    ts(a, cfg, n - 1)
    load_ptr(a, 4, KA_WS)
    a('s_waitcnt lgkmcnt(0)')
    make_srd(a, 8, 4, WS_TS, 1 << 20)
    a(f's_lshl_b32 s3, s2, 2')
    a(f's_add_u32 s3, s3, s{S_WAVE}')
    a(f's_lshl_b32 s3, s3, 6')
    a('v_mov_b32 v1, s3')
    for i in range(n):
        a(f'v_mov_b32 v2, s{S_TS + 4 * i}')
        a(f'v_mov_b32 v3, s{S_TS + 4 * i + 2}')
        a(f'buffer_store_dwordx2 v[2:3], v1, s[8:11], 0 offen offset:{8 * i}')
        a.nop(2)


def gen_attn(cfg, name='attn_kernel'):
    a = Asm()
    if cfg.get('ts'):
        a(f's_memtime s[{S_TS}:{S_TS + 1}]')
        a(f's_memrealtime s[{S_TS + 2}:{S_TS + 3}]')
    gen_setup(a, cfg)
    gen_qproj(a, cfg)
    gen_p2(a, cfg)
    gen_main(a, cfg)
    gen_epilogue(a, cfg)
    gen_ts_store(a, cfg, 5)
    a.label('L_attn_done')
    a('s_endpgm')
    errs = a.check()
    assert not errs, 'hazards in attn'
    lines = a.text().split('\n')
    lines, info1 = fold_loops(lines, 'qp', f's{S_CNT}', 'L_attn_qp')
    lines, info2 = fold_loops(lines, 'grp', f's{S_CNT}', 'L_attn_main')
    print('attn folds (start,count,groups):', info1, info2, 'waits', a.nwaits)
    return kernel_header(name) + '\n'.join(lines), kernel_desc(name, 512, 256)
```

```python
from common import *

N_GEMV = 240
N_LN = 128
JOBS_PER_WAVE = 2
N_JOBS = 1280 + 540 + 540
N_RELAY = (N_JOBS + 4 * JOBS_PER_WAVE - 1) // (4 * JOBS_PER_WAVE)
PREP_GRID = N_GEMV + N_LN + N_RELAY
PREP_LDS = 32768


def magic_div(a, q, n, d, tmp):
    m = (1 << 32) // d + 1
    a(f's_mov_b32 s{tmp}, {hex(m)}')
    a(f's_mul_hi_u32 s{q}, s{n}, s{tmp}')


def gen_gemv(a):
    make_srd(a, 12, 4, 0, 1280)
    make_srd(a, 16, 6, 0, 640 * 7680)
    make_srd(a, 20, 8, WS_MOD, SZ_MOD)
    a('s_and_b32 s24, s2, 7')
    a('s_mul_i32 s24, s24, 30')
    a('s_lshr_b32 s25, s2, 3')
    a('s_add_u32 s24, s24, s25')
    a('v_lshrrev_b32 v1, 1, v0')
    a('v_and_b32 v2, 1, v0')
    a('v_lshlrev_b32 v3, 1, v1')
    for p in range(5):
        a(f'buffer_load_ushort v{10 + p}, v3, s[12:15], 0 offen offset:{256 * p}')
    a('s_mov_b32 s26, 7680')
    a('v_mul_lo_u32 v4, v1, s26')
    a('v_lshlrev_b32 v5, 4, v2')
    a('v_add_u32 v4, v4, v5')
    a('s_lshl_b32 s27, s24, 5')
    a('v_add_u32 v4, s27, v4')
    for p in range(5):
        a(f's_mov_b32 s{28 + p}, {p * 128 * 7680}')
    for p in range(5):
        a(f'buffer_load_dwordx4 v[{20 + 4 * p}:{23 + 4 * p}], v4, s[16:19], s{28 + p} offen')
    for p in range(5):
        r = 10 + p
        a(f'v_lshlrev_b32 v{r}, 16, v{r}')
        a(f'v_mul_f32 v{15}, {fhex(-LOG2E)}, v{r}')
        a('v_exp_f32 v15, v15')
        a.nop(1)
        a('v_add_f32 v15, 1.0, v15')
        a('v_rcp_f32 v15, v15')
        a.nop(1)
        a(f'v_mul_f32 v15, v{r}, v15')
        a('v_cvt_pk_bf16_f32 v15, v15, v15')
        a(f'v_lshlrev_b32 v{r}, 16, v15')
    for p in range(5):
        for d in range(4):
            src = 20 + 4 * p + d
            a(f'v_lshlrev_b32 v16, 16, v{src}')
            a(f'v_and_b32 v17, 0xffff0000, v{src}')
            if p == 0:
                a(f'v_mul_f32 v{40 + 2 * d}, v16, v10')
                a(f'v_mul_f32 v{41 + 2 * d}, v17, v10')
            else:
                a(f'v_fmac_f32 v{40 + 2 * d}, v16, v{10 + p}')
                a(f'v_fmac_f32 v{41 + 2 * d}, v17, v{10 + p}')
    for rot in (8, 4, 2):
        for e in range(8):
            a(f'v_add_f32_dpp v{40 + e}, v{40 + e}, v{40 + e} row_ror:{rot} row_mask:0xf bank_mask:0xf')
        a.nop(1)
    for e in range(8):
        sum_over_g(a, 40 + e, 16)
    a('v_lshrrev_b32 v6, 6, v0')
    a('v_lshlrev_b32 v6, 6, v6')
    a('v_lshlrev_b32 v7, 5, v2')
    a('v_add_u32 v6, v6, v7')
    a('s_mov_b64 exec, 3')
    a('ds_write_b128 v6, v[40:43]')
    a('ds_write_b128 v6, v[44:47] offset:16')
    a('s_mov_b64 exec, -1')
    a('s_waitcnt lgkmcnt(0)')
    a('s_barrier')
    a('v_cmp_gt_u32 vcc, 16, v0')
    a('s_and_saveexec_b64 s[34:35], vcc')
    a('s_cbranch_execz L_prep_done')
    a('v_lshlrev_b32 v6, 2, v0')
    for wv in range(4):
        a(f'ds_read_b32 v{50 + wv}, v6 offset:{64 * wv}')
    a('v_add_f32 v50, v50, v51')
    a('v_add_f32 v52, v52, v53')
    a('v_add_f32 v50, v50, v52')
    a('v_cvt_pk_bf16_f32 v50, v50, v50')
    a('v_lshlrev_b32 v50, 16, v50')
    a('s_lshl_b32 s27, s24, 6')
    a('v_add_u32 v6, s27, v6')
    a('buffer_store_dword v50, v6, s[20:23], 0 offen')
    a('s_branch L_prep_done')


def gen_ln(a):
    make_srd(a, 12, 4, 0, 2048 * 1280)
    make_srd(a, 16, 8, WS_XN, SZ_XN)
    a(f's_sub_u32 s24, s2, {N_GEMV}')
    a('v_and_b32 v1, 15, v0')
    a('v_bfe_u32 v2, v0, 4, 2')
    a('v_lshrrev_b32 v3, 6, v0')
    a('s_lshl_b32 s25, s24, 4')
    a('v_add_u32 v4, s25, v1')
    a('s_movk_i32 s26, 1280')
    a('v_mul_lo_u32 v4, v4, s26')
    a('v_mul_u32_u24 v5, 320, v3')
    a('v_lshlrev_b32 v6, 4, v2')
    a('v_add3_u32 v4, v4, v5, v6')
    for t in range(5):
        a(f'buffer_load_dwordx4 v[{20 + 4 * t}:{23 + 4 * t}], v4, s[12:15], 0 offen offset:{64 * t}')
    for d in range(20):
        a(f'v_lshlrev_b32 v{40 + 2 * d}, 16, v{20 + d}')
        a(f'v_and_b32 v{41 + 2 * d}, 0xffff0000, v{20 + d}')
    a('v_lshlrev_b32 v7, 6, v3')
    a('v_lshl_add_u32 v7, v1, 2, v7')
    a('v_lshlrev_b32 v8, 2, v1')

    def reduce_round(acc, off):
        sum_over_g(a, acc, 11)
        a(f'ds_write_b32 v7, v{acc} offset:{off}')
        a('s_waitcnt lgkmcnt(0)')
        a('s_barrier')
        for wv in range(4):
            a(f'ds_read_b32 v{12 + wv}, v8 offset:{off + 64 * wv}')
        a('v_add_f32 v12, v12, v13')
        a('v_add_f32 v14, v14, v15')
        a(f'v_add_f32 v{acc}, v12, v14')

    a('v_add_f32 v10, v40, v41')
    a('v_add_f32 v9, v42, v43')
    for e in range(4, 40, 2):
        a(f'v_add_f32 v10, v10, v{40 + e}')
        a(f'v_add_f32 v9, v9, v{41 + e}')
    a('v_add_f32 v10, v10, v9')
    reduce_round(10, 0)
    a(f'v_mul_f32 v10, {fhex(1.0 / 640)}, v10')
    for e in range(40):
        a(f'v_sub_f32 v{40 + e}, v{40 + e}, v10')
    a('v_mul_f32 v10, v40, v40')
    a('v_mul_f32 v9, v41, v41')
    for e in range(2, 40, 2):
        a(f'v_fmac_f32 v10, v{40 + e}, v{40 + e}')
        a(f'v_fmac_f32 v9, v{41 + e}, v{41 + e}')
    a('v_add_f32 v10, v10, v9')
    reduce_round(10, 256)
    a(f'v_mov_b32 v9, {fhex(1e-5)}')
    a(f'v_fmac_f32 v9, {fhex(1.0 / 640)}, v10')
    a('v_rsq_f32 v9, v9')
    a.nop(1)
    a(f'v_mul_f32 v9, {fhex(QSCALE)}, v9')
    for e in range(40):
        a(f'v_mul_f32 v{40 + e}, v{40 + e}, v9')
    for d in range(20):
        a(f'v_cvt_pk_f16_f32 v{20 + d}, v{40 + 2 * d}, v{41 + 2 * d}')
    a('v_and_b32 v4, 63, v0')
    a('v_lshlrev_b32 v4, 4, v4')
    a('v_mul_u32_u24 v5, 5120, v3')
    a('v_add_u32 v4, v4, v5')
    a('s_mul_i32 s25, s24, 20480')
    a('v_add_u32 v6, 4096, v4')
    for t in range(4):
        a(f'buffer_store_dwordx4 v[{20 + 4 * t}:{23 + 4 * t}], v4, s[16:19], s25 offen offset:{1024 * t}')
    a('buffer_store_dwordx4 v[36:39], v6, s[16:19], s25 offen')
    a('s_branch L_prep_done')


def gen_relayout(a):
    make_srd(a, 12, 4, 0, 4096 * 1280)
    make_srd(a, 16, 6, 0, 640 * 3456)
    make_srd(a, 20, 10, 0, 1728 * 1280)
    make_srd(a, 24, 8, WS_WOF, SZ_WOF)
    make_srd(a, 28, 8, WS_W1F, SZ_W1F)
    make_srd(a, 32, 8, WS_W2F, SZ_W2F)
    a('v_lshrrev_b32 v1, 6, v0')
    a.nop(1)
    a('v_readfirstlane_b32 s36, v1')
    a('v_and_b32 v1, 63, v0')
    a('v_lshrrev_b32 v2, 3, v1')
    a('v_and_b32 v3, 7, v1')
    a('v_lshlrev_b32 v3, 4, v3')
    a('s_movk_i32 s37, 1280')
    a('v_mul_lo_u32 v4, v2, s37')
    a('v_add_u32 v4, v4, v3')
    a('s_movk_i32 s37, 3456')
    a('v_mul_lo_u32 v5, v2, s37')
    a('v_add_u32 v5, v5, v3')
    a('v_lshlrev_b32 v6, 4, v1')
    a('v_lshrrev_b32 v7, 4, v1')
    a('v_bfe_u32 v8, v1, 2, 2')
    a('v_lshl_add_u32 v7, v7, 2, v8')
    a('v_lshlrev_b32 v7, 7, v7')
    a('v_and_b32 v8, 3, v1')
    a('v_lshl_add_u32 v7, v8, 3, v7')
    a('s_lshl_b32 s38, s36, 13')
    a('v_add_u32 v7, s38, v7')
    a(f's_sub_u32 s39, s2, {N_GEMV + N_LN}')
    a(f's_mul_i32 s39, s39, {4 * JOBS_PER_WAVE}')
    a(f's_mul_i32 s40, s36, {JOBS_PER_WAVE}')
    a('s_add_u32 s39, s39, s40')

    variants = [(0, 1280, 10, 12, 24, 1280, 128, 4),
                (1280, 1820, 27, 16, 28, 3456, 20, 5),
                (1820, 2360, 10, 20, 32, 1280, 54, 4)]
    for t in range(JOBS_PER_WAVE):
        a(f's_add_u32 s41, s39, {t}')
        for vi, (lo, hi, ncg, srd, dsrd, stride, M, voff) in enumerate(variants):
            a(f's_cmp_lt_u32 s41, {hi}')
            a(f's_cbranch_scc0 L_rl_{t}_{vi}_next')
            a(f's_sub_u32 s42, s41, {lo}')
            magic_div(a, 43, 42, ncg, 47)
            a(f's_mul_i32 s44, s43, {ncg}')
            a('s_sub_u32 s44, s42, s44')
            a(f's_mul_i32 s45, s43, {32 * stride}')
            a('s_lshl_b32 s46, s44, 7')
            a('s_add_u32 s45, s45, s46')
            for t4 in range(4):
                a(f's_add_u32 m0, s38, {t * 4096 + t4 * 1024}')
                a(f's_add_u32 s46, s45, {t4 * 8 * stride}')
                a(f'buffer_load_dwordx4 v{voff}, s[{srd}:{srd + 3}], s46 offen lds')
            a(f's_mul_i32 s44, s44, {4 * M}')
            a('s_add_u32 s44, s44, s43')
            a(f's_lshl_b32 s{50 + t}, s44, 10')
            a(f's_branch L_rl_{t}_issued')
            a.label(f'L_rl_{t}_{vi}_next')
        a(f's_mov_b32 s{50 + t}, 0')
        a.label(f'L_rl_{t}_issued')
    a('s_waitcnt vmcnt(0)')
    a.vmq = []
    for t in range(JOBS_PER_WAVE):
        base = 20 + 16 * t
        for nb in range(4):
            for sel in range(2):
                a(f'ds_read_b64_tr_b16 v[{base + 4 * nb + 2 * sel}:{base + 4 * nb + 2 * sel + 1}], v7 '
                  f'offset:{t * 4096 + 32 * nb + 2048 * sel}')
    a('s_waitcnt lgkmcnt(0)')
    for t in range(JOBS_PER_WAVE):
        base = 20 + 16 * t
        a(f's_add_u32 s41, s39, {t}')
        for vi, (lo, hi, ncg, srd, dsrd, stride, M, voff) in enumerate(variants):
            a(f's_cmp_lt_u32 s41, {hi}')
            a(f's_cbranch_scc0 L_rs_{t}_{vi}_next')
            for nb in range(4):
                a(f's_add_u32 s46, s{50 + t}, {nb * M * 1024}')
                a(f'buffer_store_dwordx4 v[{base + 4 * nb}:{base + 4 * nb + 3}], v6, s[{dsrd}:{dsrd + 3}], s46 offen')
            a(f's_branch L_rs_{t}_done')
            a.label(f'L_rs_{t}_{vi}_next')
        a.label(f'L_rs_{t}_done')
    a('s_branch L_prep_done')


def gen_prep(name='prep_kernel'):
    a = Asm()
    a(f's_cmp_ge_u32 s2, {PREP_GRID}')
    a('s_cbranch_scc1 L_prep_done')
    load_ptr(a, 8, KA_WS)
    a(f's_cmp_ge_u32 s2, {N_GEMV}')
    a('s_cbranch_scc1 L_prep_not_gemv')
    load_ptr(a, 4, KA_C)
    load_ptr(a, 6, KA_WMOD)
    a('s_waitcnt lgkmcnt(0)')
    gen_gemv(a)
    a.label('L_prep_not_gemv')
    a.vmq, a.lgq = [], []
    a(f's_cmp_ge_u32 s2, {N_GEMV + N_LN}')
    a('s_cbranch_scc1 L_prep_relay')
    load_ptr(a, 4, KA_X)
    a('s_waitcnt lgkmcnt(0)')
    gen_ln(a)
    a.label('L_prep_relay')
    a.vmq, a.lgq = [], []
    load_ptr(a, 4, KA_WO)
    load_ptr(a, 6, KA_W1)
    load_ptr(a, 10, KA_W2)
    a('s_waitcnt lgkmcnt(0)')
    gen_relayout(a)
    a.label('L_prep_done')
    a('s_endpgm')
    errs = a.check()
    assert not errs, 'hazards in prep'
    return kernel_header(name) + a.text(), kernel_desc(name, 96, 96)
```

```python
from common import *


def m16(d, a_, b_, c):
    return f'v_mfma_f32_16x16x32_bf16 {d}, {a_}, {b_}, {c}'


def ts(a, cfg, idx, base=60):
    if cfg.get('ts'):
        a(f's_memtime s[{base + 4 * idx}:{base + 4 * idx + 1}]')
        a(f's_memrealtime s[{base + 4 * idx + 2}:{base + 4 * idx + 3}]')
        a('s_waitcnt lgkmcnt(0)')


def ts_store(a, cfg, n, slot, swave, base=60):
    if not cfg.get('ts'):
        return
    a.wait_all()
    ts(a, cfg, n - 1)
    load_ptr(a, 4, KA_WS)
    a('s_waitcnt lgkmcnt(0)')
    make_srd(a, 8, 4, WS_TS + slot * 65536, 65536)
    a('s_lshl_b32 s3, s2, 2')
    a(f's_add_u32 s3, s3, s{swave}')
    a('s_lshl_b32 s3, s3, 6')
    a('v_mov_b32 v1, s3')
    for i in range(n):
        a(f'v_mov_b32 v2, s{base + 4 * i}')
        a(f'v_mov_b32 v3, s{base + 4 * i + 2}')
        a(f'buffer_store_dwordx2 v[2:3], v1, s[8:11], 0 offen offset:{8 * i}')
        a.nop(2)


S_A, S_B, S_X, S_M, S_O1, S_O2, S_O3 = 8, 12, 16, 20, 24, 28, 52
S_WAVE, S_RT, S_CT, S_KOFF = 32, 33, 34, 35
V_TID, V_VB, V_VA = 250, 240, 244
V_EP = 80
RING = 4


def ring_reg(slot, f):
    return slot * 36 + f * 4


def gen_splitk(cfg, kind):
    oproj = kind == 'oproj'
    M = 128 if oproj else 54
    nsteps = 32 if oproj else 14
    a = Asm()
    L = f'L_{kind}'
    if cfg.get('ts'):
        a('s_memtime s[60:61]')
        a('s_memrealtime s[62:63]')
    a('s_cmp_ge_u32 s2, 256')
    a(f's_cbranch_scc1 {L}_done')
    load_ptr(a, 4, KA_WS)
    load_ptr(a, 6, KA_X if oproj else KA_OUT)
    a(f'v_mov_b32 v{V_TID}, v0')
    a('v_lshrrev_b32 v1, 6, v0')
    a('s_and_b32 s3, s2, 7')
    a('s_lshr_b32 s36, s2, 3')
    a(f'v_readfirstlane_b32 s{S_WAVE}, v1')
    a(f's_lshr_b32 s{S_RT}, s3, 1')
    a(f's_lshl_b32 s{S_RT}, s{S_RT}, 3')
    a('s_and_b32 s37, s36, 7')
    a(f's_add_u32 s{S_RT}, s{S_RT}, s37')
    a(f's_and_b32 s{S_CT}, s3, 1')
    a(f's_lshl_b32 s{S_CT}, s{S_CT}, 2')
    a('s_lshr_b32 s37, s36, 3')
    a(f's_add_u32 s{S_CT}, s{S_CT}, s37')
    a('s_waitcnt lgkmcnt(0)')
    if oproj:
        make_srd(a, S_A, 4, WS_WOF, SZ_WOF)
        make_srd(a, S_B, 4, WS_O, SZ_O)
        make_srd(a, S_X, 6, 0, 2048 * 1280)
        make_srd(a, S_O1, 4, WS_Y, SZ_Y)
        make_srd(a, S_O2, 4, WS_X2, SZ_X2)
        make_srd(a, S_O3, 4, WS_STATS, SZ_STATS)
    else:
        make_srd(a, S_A, 4, WS_W2F, SZ_W2F)
        make_srd(a, S_B, 4, WS_H, SZ_H)
        make_srd(a, S_X, 4, WS_X2, SZ_X2)
        make_srd(a, S_O1, 6, 0, 2048 * 1280)
    make_srd(a, S_M, 4, WS_MOD, SZ_MOD)
    if oproj:
        a(f's_lshl_b32 s38, s{S_WAVE}, 5')
    else:
        a(f's_mul_i32 s38, s{S_WAVE}, 14')
        a(f's_cmp_eq_u32 s{S_WAVE}, 3')
        a('s_cselect_b32 s39, 1, 0')
        a('s_sub_u32 s38, s38, s39')
    a(f'v_and_b32 v2, 63, v{V_TID}')
    a('v_lshlrev_b32 v3, 4, v2')
    a('s_lshl_b32 s39, s38, 10')
    a('v_add_u32 v4, s39, v3')
    for r in range(4):
        a(f's_lshl_b32 s39, s{S_RT}, 2')
        a(f's_add_u32 s39, s39, {r}')
        a(f's_mul_i32 s39, s39, {M * 1024}')
        a(f'v_add_u32 v{V_VB + r}, s39, v4')
    for c in range(5):
        a(f's_mul_i32 s39, s{S_CT}, 5')
        a(f's_add_u32 s39, s39, {c}')
        a(f's_mul_i32 s39, s39, {M * 1024}')
        a(f'v_add_u32 v{V_VA + c}, s39, v4')

    def loads(step, soff):
        out = []
        slot = step % RING
        imm = (step & 3) * 1024
        for f in range(9):
            srd = S_B if f < 4 else S_A
            v = V_VB + f if f < 4 else V_VA + f - 4
            r = ring_reg(slot, f)
            out.append((f'buffer_load_dwordx4 a[{r}:{r + 3}], v{v}, s[{srd}:{srd + 3}], {soff} offen offset:{imm}',
                        ('k', step)))
        return out

    a(f's_mov_b32 s{S_KOFF}, 0')
    for step in range(RING):
        for t, tag in loads(step, '0'):
            a(t, tag=tag)
    i_, g_ = 5, 6
    a(f'v_and_b32 v{i_}, 15, v2')
    a(f'v_lshrrev_b32 v{g_}, 4, v2')
    a(f's_mul_i32 s39, s{S_CT}, 320')
    a(f'v_lshl_add_u32 v7, v{g_}, 4, s39')
    if oproj:
        a(f's_lshl_b32 s40, s{S_RT}, 2')
        a(f's_add_u32 s40, s40, s{S_WAVE}')
        a('s_lshl_b32 s41, s40, 4')
        a(f'v_add_u32 v8, s41, v{i_}')
        a('s_movk_i32 s41, 1280')
        a('v_mul_lo_u32 v9, v8, s41')
        a('v_lshrrev_b32 v10, 1, v7')
        a('v_add_u32 v9, v9, v10')
        for c in range(5):
            a(f'buffer_load_dwordx2 v[{V_EP + 2 * c}:{V_EP + 2 * c + 1}], v9, s[{S_X}:{S_X + 3}], 0 offen offset:{32 * c}')
        a(f's_movk_i32 s41, {1280 * 4}')
        a(f's_movk_i32 s42, {2560 * 4}')
        for c in range(5):
            a(f'buffer_load_dwordx4 v[{V_EP + 12 + 4 * c}:{V_EP + 15 + 4 * c}], v7, s[{S_M}:{S_M + 3}], s41 offen offset:{64 * c}')
        for c in range(5):
            a(f'buffer_load_dwordx4 v[{V_EP + 32 + 4 * c}:{V_EP + 35 + 4 * c}], v7, s[{S_M}:{S_M + 3}], s42 offen offset:{64 * c}')
    else:
        a(f's_lshl_b32 s40, s{S_RT}, 3')
        a(f's_add_u32 s40, s40, s{S_CT}')
        a('s_lshl_b32 s40, s40, 2')
        a(f's_add_u32 s40, s40, s{S_WAVE}')
        a('s_mul_i32 s40, s40, 5120')
        a('s_add_u32 s41, s40, 4096')
        for c in range(5):
            so, imm = ('s40', 1024 * c) if c < 4 else ('s41', 0)
            a(f'buffer_load_dwordx4 v[{V_EP + 4 * c}:{V_EP + 3 + 4 * c}], v3, s[{S_X}:{S_X + 3}], {so} offen offset:{imm}')
        a(f's_movk_i32 s41, {3200 * 4}')
        for c in range(5):
            a(f'buffer_load_dwordx4 v[{V_EP + 20 + 4 * c}:{V_EP + 23 + 4 * c}], v7, s[{S_M}:{S_M + 3}], s41 offen offset:{64 * c}')
    if oproj:
        gen_uv_job(a, cfg)
    for r in range(80):
        a(f'v_mov_b32 v{r + 0}, 0') if r >= 12 else None
    a('v_mov_b32 v236, v3')
    a('v_mov_b32 v237, v8' if oproj else 'v_mov_b32 v237, v5')
    a('v_mov_b32 v238, v6')
    a('v_mov_b32 v239, v5')
    for r in range(12):
        a(f'v_mov_b32 v{r}, 0')
    ts(a, cfg, 1)

    def step_mfma(step):
        slot = step % RING
        out = []
        for c in range(5):
            for r in range(4):
                d = vr((r * 5 + c) * 4, 4)
                out.append(m16(d, ar(ring_reg(slot, 4 + c), 4), ar(ring_reg(slot, r), 4), d))
        return out

    for step in range(nsteps):
        if oproj and step % 4 == 0:
            a.mark(f'sk{step // 4}')
        a.wait_tag_vm(lambda t: t == ('k', step))
        nxt = step + RING
        skip = (not oproj) and step == 13
        if skip:
            a(f's_cmp_ge_u32 s{S_WAVE}, 2')
            a(f's_cbranch_scc1 {L}_skip13')
        ms = step_mfma(step)
        ld = []
        if nxt < nsteps:
            if oproj:
                if step % 4 == 0:
                    a(f's_add_u32 s{S_KOFF}, s{S_KOFF}, 4096')
                ld = loads(nxt, f's{S_KOFF}')
            else:
                so = (nxt >> 2) * 4096
                if nxt == 13:
                    a(f's_mov_b32 s39, {so}')
                    a(f's_cmp_ge_u32 s{S_WAVE}, 2')
                    a(f's_cselect_b32 s{S_KOFF}, {so - 1024}, s39')
                else:
                    a(f's_mov_b32 s{S_KOFF}, {so}')
                ld = loads(nxt, f's{S_KOFF}')
        for k, m in enumerate(ms):
            a(m)
            if ld and k % 4 == 3:
                c = k // 4
                t, tag = ld[4 + c]
                if c < 4:
                    a(t, tag=tag)
        if ld:
            for f in (8, 0, 1, 2, 3):
                a(ld[f][0], tag=ld[f][1])
        if skip:
            a.label(f'{L}_skip13')
    if oproj:
        a.mark('skend')
    ts(a, cfg, 2)
    a.nop(8)
    a(f's_mul_i32 s39, s{S_WAVE}, 20480')
    a('v_add_u32 v230, s39, v236')
    for r in range(4):
        for c in range(5):
            b = (r * 5 + c) * 4
            a(f'ds_write_b128 v230, v[{b}:{b + 3}] offset:{(r * 5 + c) * 1024}')
    a(f's_mul_i32 s39, s{S_WAVE}, 5120')
    a('v_add_u32 v230, s39, v236')
    a('v_add_u32 v231, 40960, v230')
    a('s_waitcnt lgkmcnt(0)')
    a('s_barrier')
    for w2 in range(4):
        for c in range(5):
            b = (w2 * 5 + c) * 4
            a(f'ds_read_b128 v[{b}:{b + 3}], v{230 + (w2 >> 1)} offset:{(w2 & 1) * 20480 + c * 1024}')
    for c in range(5):
        for e in range(4):
            b = c * 4 + e
            a(f'v_add_f32 v{b}, v{b}, v{b + 20}')
            a(f'v_add_f32 v{b + 40}, v{b + 40}, v{b + 60}')
            a(f'v_add_f32 v{b}, v{b}, v{b + 40}')
    if oproj:
        for c in range(5):
            x0 = V_EP + 2 * c
            for e in range(4):
                src = x0 + (e >> 1)
                if e & 1:
                    a(f'v_and_b32 v20, 0xffff0000, v{src}')
                else:
                    a(f'v_lshlrev_b32 v20, 16, v{src}')
                a(f'v_fma_f32 v{c * 4 + e}, v{V_EP + 12 + 4 * c + e}, v{c * 4 + e}, v20')
        a(f's_lshl_b32 s40, s{S_RT}, 3')
        a(f's_add_u32 s40, s40, s{S_CT}')
        a('s_lshl_b32 s40, s40, 2')
        a(f's_add_u32 s40, s40, s{S_WAVE}')
        a('s_mul_i32 s40, s40, 5120')
        a('s_add_u32 s41, s40, 4096')
        for c in range(5):
            so, imm = ('s40', 1024 * c) if c < 4 else ('s41', 0)
            a(f'buffer_store_dwordx4 v[{4 * c}:{4 * c + 3}], v236, s[{S_O2}:{S_O2 + 3}], {so} offen offset:{imm}')
        a(f's_lshl_b32 s40, s{S_RT}, 2')
        a(f's_add_u32 s40, s40, s{S_WAVE}')
        a('s_mul_i32 s40, s40, 20480')
        for c in range(5):
            cb = V_EP + 32 + 4 * c
            for e in range(4):
                a(f'v_add_f32 v{cb + e}, 1.0, v{cb + e}')
            a(f'v_cvt_pk_bf16_f32 v20, v{cb}, v{cb + 1}')
            a(f'v_cvt_pk_bf16_f32 v21, v{cb + 2}, v{cb + 3}')
            a(f'v_lshlrev_b32 v{cb}, 16, v20')
            a(f'v_and_b32 v{cb + 1}, 0xffff0000, v20')
            a(f'v_lshlrev_b32 v{cb + 2}, 16, v21')
            a(f'v_and_b32 v{cb + 3}, 0xffff0000, v21')
            for e in range(4):
                a(f'v_mul_f32 v{cb + e}, v{cb + e}, v{4 * c + e}')
            y = 24 + 2 * c
            a(f'v_cvt_pk_bf16_f32 v{y}, v{cb}, v{cb + 1}')
            a(f'v_cvt_pk_bf16_f32 v{y + 1}, v{cb + 2}, v{cb + 3}')
            a(f's_mul_i32 s41, s{S_CT}, 5')
            a(f's_add_u32 s41, s41, {c}')
            a('s_and_b32 s42, s41, 1')
            a('s_lshl_b32 s42, s42, 3')
            a('s_lshr_b32 s41, s41, 1')
            a('s_lshl_b32 s41, s41, 10')
            a('s_add_u32 s41, s41, s42')
            a('s_add_u32 s41, s41, s40')
            a(f'buffer_store_dwordx2 v[{y}:{y + 1}], v236, s[{S_O1}:{S_O1 + 3}], s41 offen')
        a('v_add_f32 v20, v0, v1')
        for e in range(2, 20):
            a(f'v_add_f32 v20, v20, v{e}')
        sum_over_g(a, 20, 21)
        a(f'v_mul_f32 v20, {fhex(1.0 / 80)}, v20')
        a('v_sub_f32 v22, v0, v20')
        a('v_mul_f32 v21, v22, v22')
        for e in range(1, 20):
            a(f'v_sub_f32 v22, v{e}, v20')
            a('v_fmac_f32 v21, v22, v22')
        sum_over_g(a, 21, 22)
        a('v_lshlrev_b32 v22, 6, v237')
        a(f's_lshl_b32 s41, s{S_CT}, 3')
        a('s_mov_b64 exec, 0xffff')
        a(f'buffer_store_dwordx2 v[20:21], v22, s[{S_O3}:{S_O3 + 3}], s41 offen')
        a('s_mov_b64 exec, -1')
    else:
        k = 1.0 / LOG2E
        a(f's_lshl_b32 s40, s{S_RT}, 2')
        a(f's_add_u32 s40, s40, s{S_WAVE}')
        a('s_lshl_b32 s40, s40, 4')
        a('v_add_u32 v22, s40, v239')
        a('s_movk_i32 s41, 1280')
        a('v_mul_lo_u32 v22, v22, s41')
        a(f's_mul_i32 s41, s{S_CT}, 160')
        a('v_lshl_add_u32 v23, v238, 3, s41')
        a('v_add_u32 v22, v22, v23')
        for c in range(5):
            for e in range(4):
                g = V_EP + 20 + 4 * c + e
                a(f'v_mul_f32 v{g}, {fhex(k)}, v{g}')
                a(f'v_fma_f32 v{4 * c + e}, v{g}, v{4 * c + e}, v{V_EP + 4 * c + e}')
            y = 24 + 2 * c
            a(f'v_cvt_pk_bf16_f32 v{y}, v{4 * c}, v{4 * c + 1}')
            a(f'v_cvt_pk_bf16_f32 v{y + 1}, v{4 * c + 2}, v{4 * c + 3}')
            a(f'buffer_store_dwordx2 v[{y}:{y + 1}], v22, s[{S_O1}:{S_O1 + 3}], 0 offen offset:{32 * c}')
    ts_store(a, cfg, 4, 1 if oproj else 3, S_WAVE)
    a.label(f'{L}_done')
    a('s_endpgm')
    errs = a.check()
    assert not errs
    lines = a.text().split('\n')
    if oproj:
        lines, info = fold_loops(lines, 'sk', 's43', f'{L}_loop')
        print(kind, 'fold', info)
    return '\n'.join(lines)


def gen_uv_job(a, cfg):
    S_W1, S_UV = 44, 48
    saved = (list(a.vmq), list(a.lgq))
    a('s_cmp_ge_u32 s2, 108')
    a('s_cbranch_scc1 L_uv_skip')
    make_srd(a, S_W1, 4, WS_W1F, SZ_W1F)
    make_srd(a, S_UV, 4, WS_UV, SZ_UV)
    a('s_mul_i32 s39, s2, 20')
    a(f's_mul_i32 s40, s{S_WAVE}, 5')
    a('s_add_u32 s39, s39, s40')
    a('s_lshl_b32 s39, s39, 10')
    a('s_add_u32 s41, s39, 4096')
    for t in range(5):
        so, imm = ('s39', 1024 * t) if t < 4 else ('s41', 0)
        a(f'buffer_load_dwordx4 v[{140 + 4 * t}:{143 + 4 * t}], v3, s[{S_W1}:{S_W1 + 3}], {so} offen offset:{imm}')
    a('v_cmp_eq_u32 vcc, 0, v5')
    a(f'v_mov_b32 v10, {1920 * 4}')
    a(f'v_mov_b32 v11, {2560 * 4}')
    a('v_cndmask_b32 v10, v10, v11, vcc')
    a('v_lshl_add_u32 v10, v6, 4, v10')
    a(f's_mul_i32 s39, s{S_WAVE}, {5 * 128}')
    a('v_add_u32 v10, s39, v10')
    a('v_cndmask_b32 v11, 0, 1.0, vcc')
    for t in range(5):
        for hh in range(2):
            r = 160 + 8 * t + 4 * hh
            a(f'buffer_load_dwordx4 v[{r}:{r + 3}], v10, s[{S_M}:{S_M + 3}], 0 offen offset:{128 * t + 64 * hh}')
    for t in range(5):
        r = 160 + 8 * t
        for e in range(8):
            a(f'v_add_f32 v{r + e}, v{r + e}, v11')
        for d in range(4):
            a(f'v_cvt_pk_bf16_f32 v{200 + 4 * t + d}, v{r + 2 * d}, v{r + 2 * d + 1}')
    a.nop(2)
    for t in range(5):
        a(m16('v[220:223]', vr(140 + 4 * t, 4), vr(200 + 4 * t, 4), '0' if t == 0 else 'v[220:223]'))
    a.nop(8)
    a('v_lshlrev_b32 v10, 6, v5')
    a('v_lshl_add_u32 v10, v6, 4, v10')
    a(f's_lshl_b32 s39, s{S_WAVE}, 7')
    a('s_add_u32 s39, s39, 81920')
    a('v_add_u32 v10, s39, v10')
    a('v_cmp_gt_u32 vcc, 2, v5')
    a('s_and_saveexec_b64 s[40:41], vcc')
    a('ds_write_b128 v10, v[220:223]')
    a('s_mov_b64 exec, s[40:41]')
    a('s_waitcnt lgkmcnt(0)')
    a('s_barrier')
    a(f'v_lshlrev_b32 v10, 2, v{V_TID}')
    a('v_add_u32 v11, 81920, v10')
    for w in range(4):
        a(f'ds_read_b32 v{220 + w}, v11 offset:{128 * w}')
    a('v_add_f32 v220, v220, v221')
    a('v_add_f32 v222, v222, v223')
    a('v_add_f32 v220, v220, v222')
    a(f'v_mul_f32 v220, {fhex(LOG2E)}, v220')
    a(f'v_lshrrev_b32 v11, 4, v{V_TID}')
    a(f'v_mul_u32_u24 v11, {1728 * 4}, v11')
    a(f'v_and_b32 v10, 15, v{V_TID}')
    a('v_lshl_add_u32 v11, v10, 2, v11')
    a('s_lshl_b32 s39, s2, 6')
    a(f'v_cmp_gt_u32 vcc, 32, v{V_TID}')
    a('s_and_saveexec_b64 s[40:41], vcc')
    a(f'buffer_store_dword v220, v11, s[{S_UV}:{S_UV + 3}], s39 offen')
    a('s_mov_b64 exec, s[40:41]')
    a.wait_all()
    a.label('L_uv_skip')
    a.vmq, a.lgq = saved


def gen_ffn1(cfg):
    a = Asm()
    L = 'L_ffn1'
    S_W, S_Y, S_ST, S_UV, S_H = 8, 12, 16, 20, 24
    S_WV, S_RT4, S_CT4, S_M0 = 32, 33, 34, 35
    S_NB = 44
    if cfg.get('ts'):
        a('s_memtime s[60:61]')
        a('s_memrealtime s[62:63]')
    a('s_cmp_ge_u32 s2, 256')
    a(f's_cbranch_scc1 {L}_done')
    load_ptr(a, 4, KA_WS)
    a('v_mov_b32 v250, v0')
    a('v_lshrrev_b32 v1, 6, v0')
    a('s_and_b32 s3, s2, 7')
    a('s_lshr_b32 s36, s2, 3')
    a(f'v_readfirstlane_b32 s{S_WV}, v1')
    a(f's_lshr_b32 s{S_RT4}, s3, 1')
    a(f's_lshl_b32 s{S_RT4}, s{S_RT4}, 2')
    a('s_and_b32 s37, s36, 3')
    a(f's_add_u32 s{S_RT4}, s{S_RT4}, s37')
    a(f's_and_b32 s{S_CT4}, s3, 1')
    a(f's_lshl_b32 s{S_CT4}, s{S_CT4}, 3')
    a('s_lshr_b32 s37, s36, 2')
    a(f's_add_u32 s{S_CT4}, s{S_CT4}, s37')
    a('s_waitcnt lgkmcnt(0)')
    make_srd(a, S_W, 4, WS_W1F, SZ_W1F)
    make_srd(a, S_Y, 4, WS_Y, SZ_Y)
    make_srd(a, S_ST, 4, WS_STATS, SZ_STATS)
    make_srd(a, S_UV, 4, WS_UV, SZ_UV)
    make_srd(a, S_H, 4, WS_H, SZ_H)
    for c in range(7):
        a(f's_mul_i32 s37, s{S_CT4}, 7')
        a(f's_add_u32 s37, s37, {c}')
        a('s_min_u32 s37, s37, 107')
        a(f's_mul_i32 s{S_NB + c}, s37, 20480')
    a('v_and_b32 v2, 63, v250')
    a('v_lshlrev_b32 v3, 4, v2')
    a(f's_lshl_b32 s37, s{S_WV}, 10')
    a('v_add_u32 v243, s37, v3')
    a(f's_mul_i32 s{S_M0}, s{S_WV}, 7168')
    for r in range(2):
        a(f's_lshl_b32 s37, s{S_RT4}, 3')
        a(f's_lshl_b32 s38, s{S_WV}, 1')
        a('s_add_u32 s37, s37, s38')
        a(f's_add_u32 s37, s37, {r}')
        a('s_mul_i32 s37, s37, 20480')
        a(f'v_add_u32 v{240 + r}, s37, v3')
    for t in range(5):
        a(f's_mov_b32 s{52 + t}, {t * 4096}')

    def group(t):
        for c in range(7):
            a(f's_add_u32 m0, s{S_M0}, {t * 28672 + c * 1024}')
            a(f's_add_u32 s37, s{S_NB + c}, {t * 4096}')
            a(f'buffer_load_dwordx4 v243, s[{S_W}:{S_W + 3}], s37 offen lds', tag=('A', t))
        for mm in range(4):
            m = 4 * t + mm
            for r in range(2):
                b = (m * 2 + r) * 4
                a(f'buffer_load_dwordx4 a[{b}:{b + 3}], v{240 + r}, s[{S_Y}:{S_Y + 3}], s{52 + t} offen offset:{mm * 1024}',
                  tag=('B', m))

    group(0)
    a('v_and_b32 v5, 15, v2')
    a('v_lshrrev_b32 v6, 4, v2')
    for r in range(2):
        a(f's_lshl_b32 s37, s{S_RT4}, 3')
        a(f's_lshl_b32 s38, s{S_WV}, 1')
        a('s_add_u32 s37, s37, s38')
        a(f's_add_u32 s37, s37, {r}')
        a('s_lshl_b32 s37, s37, 4')
        a('v_add_u32 v7, s37, v5')
        a('v_lshlrev_b32 v7, 6, v7')
        for k in range(4):
            b = 100 + 16 * r + 4 * k
            a(f'buffer_load_dwordx4 v[{b}:{b + 3}], v7, s[{S_ST}:{S_ST + 3}], 0 offen offset:{16 * k}')
    a('v_lshlrev_b32 v7, 4, v6')
    a(f's_movk_i32 s38, {1728 * 4}')
    for c in range(7):
        a(f's_mul_i32 s37, s{S_CT4}, 7')
        a(f's_add_u32 s37, s37, {c}')
        a('s_min_u32 s37, s37, 107')
        a('s_lshl_b32 s37, s37, 6')
        a(f'buffer_load_dwordx4 v[{140 + 4 * c}:{143 + 4 * c}], v7, s[{S_UV}:{S_UV + 3}], s37 offen')
        a('s_add_u32 s37, s37, s38')
        a(f'buffer_load_dwordx4 v[{170 + 4 * c}:{173 + 4 * c}], v7, s[{S_UV}:{S_UV + 3}], s37 offen')
    group(1)
    for r in range(2):
        b = 100 + 16 * r
        a(f'v_add_f32 v8, v{b}, v{b + 2}')
        for k in range(2, 8):
            a(f'v_add_f32 v8, v8, v{b + 2 * k}')
        a(f'v_mul_f32 v8, 0.125, v8') if False else a(f'v_mul_f32 v8, {fhex(0.125)}, v8')
        a(f'v_add_f32 v9, v{b + 1}, v{b + 3}')
        for k in range(2, 8):
            a(f'v_add_f32 v9, v9, v{b + 2 * k + 1}')
        for k in range(8):
            a(f'v_sub_f32 v10, v{b + 2 * k}, v8')
            a(f'v_mul_f32 v10, v10, v10')
            a(f'v_fmac_f32 v9, {fhex(80.0)}, v10')
        a(f'v_mov_b32 v10, {fhex(1e-5)}')
        a(f'v_fmac_f32 v10, {fhex(1.0 / 640)}, v9')
        a('v_rsq_f32 v10, v10')
        a.nop(1)
        a(f'v_mul_f32 v{244 + 2 * r}, {fhex(LOG2E)}, v10')
        a(f'v_mul_f32 v{245 + 2 * r}, v8, v10')
    group(2)
    a('v_mov_b32 v242, v3')
    for r in range(56):
        a(f'v_mov_b32 v{r}, 0')
    a('v_mov_b32 v230, v242')
    a('v_add_u32 v231, 57344, v242')
    a('v_add_u32 v232, 114688, v242')
    ts(a, cfg, 1)

    def a_read(m, c):
        f = m * 7 + c
        base = f // 56
        r = 160 + (m & 1) * 28 + c * 4
        return f'ds_read_b128 a[{r}:{r + 3}], v{230 + base} offset:{(f - base * 56) * 1024}'

    for m in range(20):
        t = m // 4
        if m % 4 == 0:
            a.wait_tag_vm(lambda tg: tg == ('A', t))
            a('s_barrier')
            if t == 0:
                group(3)
            if t == 1:
                group(4)
            for c in range(7):
                a(a_read(m, c))
        a.wait_tag_vm(lambda tg: tg == ('B', m))
        nxt = [a_read(m + 1, c) for c in range(7)] if (m + 1) % 4 != 0 else []
        k = 0
        for c in range(7):
            for r in range(2):
                d = vr((r * 7 + c) * 4, 4)
                bb = (m * 2 + r) * 4
                a(m16(d, ar(160 + (m & 1) * 28 + c * 4, 4), ar(bb, 4), d))
                if nxt and r == 1:
                    a(nxt[c])
    ts(a, cfg, 2)
    a.nop(8)
    for r in range(2):
        a(f's_lshl_b32 s37, s{S_RT4}, 3')
        a(f's_lshl_b32 s38, s{S_WV}, 1')
        a('s_add_u32 s37, s37, s38')
        a(f's_add_u32 s37, s37, {r}')
        a(f's_mul_i32 s{40 + r}, s37, {54 * 1024}')
    for c in range(7):
        a(f's_mul_i32 s38, s{S_CT4}, 7')
        a(f's_add_u32 s38, s38, {c}')
        a('s_cmp_ge_u32 s38, 108')
        a(f's_cbranch_scc1 {L}_skip_{c}')
        a('s_and_b32 s39, s38, 1')
        a('s_lshl_b32 s39, s39, 3')
        a('s_lshr_b32 s38, s38, 1')
        a('s_lshl_b32 s38, s38, 10')
        a('s_add_u32 s38, s38, s39')
        for r in range(2):
            b = (r * 7 + c) * 4
            T = 60 + 8 * r
            for e in range(4):
                a(f'v_fma_f32 v{T + e}, -v{245 + 2 * r}, v{140 + 4 * c + e}, v{170 + 4 * c + e}')
            for e in range(4):
                a(f'v_fma_f32 v{b + e}, v{244 + 2 * r}, v{b + e}, v{T + e}')
            for e in range(4):
                a(f'v_exp_f32 v{T + e}, -v{b + e}')
            for e in range(4):
                a(f'v_add_f32 v{T + e}, 1.0, v{T + e}')
            for e in range(4):
                a(f'v_rcp_f32 v{T + e}, v{T + e}')
            for e in range(4):
                a(f'v_mul_f32 v{b + e}, v{b + e}, v{T + e}')
            a(f'v_cvt_pk_bf16_f32 v{T + 4}, v{b}, v{b + 1}')
            a(f'v_cvt_pk_bf16_f32 v{T + 5}, v{b + 2}, v{b + 3}')
            a(f's_add_u32 s39, s38, s{40 + r}')
            a(f'buffer_store_dwordx2 v[{T + 4}:{T + 5}], v242, s[{S_H}:{S_H + 3}], s39 offen')
        a.label(f'{L}_skip_{c}')
    ts_store(a, cfg, 4, 2, S_WV)
    a.label(f'{L}_done')
    a('s_endpgm')
    errs = a.check()
    assert not errs
    return a.text()


def gen(stage, cfg):
    name = stage + '_kernel'
    if cfg.get('final') == stage:
        name = cfg['final_name']
    if stage in ('oproj', 'ffn2'):
        body = gen_splitk(cfg, stage)
        lds = 81920 + 1024
        desc = kernel_desc(name, 512, 256)
    else:
        body = gen_ffn1(cfg)
        lds = 140 * 1024
        desc = kernel_desc(name, 512, 256)
    launch = f'; @launch kernel={name} grid=(256,1,1) block=(256,1,1) lds={lds}'
    return kernel_header(name) + body, desc, launch
```

```python
import sys, json
sys.path.insert(0, 'dev')
from common import *
import k_prep, k_attn

NAME = 'adaLN_cond__mha_block_cached__dense_activation_silu__prompt'

def build(cfg):
    parts, descs, launches = [], [], []
    stages = cfg.get('stages', ['prep', 'attn'])
    if 'prep' in stages:
        b, d = k_prep.gen_prep('prep_kernel')
        parts.append(b); descs.append(d)
        launches.append(f'; @launch kernel=prep_kernel grid=({k_prep.PREP_GRID},1,1) block=(256,1,1) lds={k_prep.PREP_LDS}')
    if 'attn' in stages:
        b, d = k_attn.gen_attn(cfg, 'attn_kernel')
        parts.append(b); descs.append(d)
        launches.append(f'; @launch kernel=attn_kernel grid=(256,1,1) block=(256,1,1) lds={k_attn.ATT_LDS}')
    try:
        import k_tail
        for st in ('oproj', 'ffn1', 'ffn2'):
            if st in stages:
                b, d, l = k_tail.gen(st, cfg)
                parts.append(b); descs.append(d); launches.append(l)
    except ImportError:
        pass
    hdr = '\n'.join(launches) + '\n'
    hdr = ('; adaLN-conditioned block: mod/LN prep -> fused Q-projection + attention -> O-projection -> FFN\n'
           '; generated by a hand-written generator script (dev/gen.py)\n') + hdr
    txt = hdr + '.amdgcn_target "amdgcn-amd-amdhsa--gfx950"\n.text\n' + '\n'.join(parts)
    txt += '\n.section .rodata,"a"\n'
    for d in descs:
        txt += '.p2align 6\n' + d
    return txt

if __name__ == '__main__':
    out = sys.argv[1]
    cfg = json.loads(sys.argv[2]) if len(sys.argv) > 2 else {}
    open(out, 'w').write(build(cfg))
```

```python
from common import *

LOAD_SC = ''
STORE_SC = ''
ATT_LDS = 163840
SB_OFF = 131072
FLAG_OFF = SB_OFF + 5120

S_K, S_V, S_W, S_X, S_O, S_M = 8, 12, 16, 20, 24, 28
S_WAVE, S_HEAD, S_QBLK, S_M0B = 32, 33, 34, 35
S_KOFF, S_CNT, S_TMP, S_MAX = 36, 38, 39, 37
S_XOFF = 44
S_WITEM, S_T1, S_T2, S_M0A, S_M0C = 48, 49, 50, 51, 52
S_ADJ = 62
S_TS = 60

V_XN = 128
V_H = 192
V_SB = 200
V_T = 232
V_WA = 236
V_WD, V_XA, V_SBA = 240, 241, 242
V_KD = 243
V_VD = 247
V_TID = 249
V_TMP = 250

V_S = 128
V_P = 144
V_E = 152
V_L = 160
V_KA = 164
V_VA = 168
V_X = 176

A_Q = 0
A_KF = 64
A_VF = 128
A_L = 192
A_ONE = 208
A_ZERO = 212


def O(qb, db):
    return (qb * 8 + db) * 4


def KF(par, kb, ds):
    return A_KF + par * 32 + (kb * 4 + ds) * 4


def WF(par, db):
    return A_KF + par * 32 + db * 4


def VF(par, db):
    return A_VF + par * 32 + db * 4


def QF(qb, ds):
    return A_Q + (qb * 4 + ds) * 4


def mfma(d, a_, b_, c):
    return f'v_mfma_f32_16x16x32_bf16 {d}, {a_}, {b_}, {c}'


class Stream:
    def __init__(self, a):
        self.a = a

    def run(self, slots):
        for m, fill in slots:
            if m is not None:
                self.a(m)
            for f in fill:
                if callable(f):
                    f()
                else:
                    self.a(f[0], tag=f[1]) if isinstance(f, tuple) else self.a(f)


def ts(a, cfg, idx):
    if cfg.get('ts'):
        a(f's_memtime s[{S_TS + 4 * idx}:{S_TS + 4 * idx + 1}]')
        a(f's_memrealtime s[{S_TS + 4 * idx + 2}:{S_TS + 4 * idx + 3}]')
        a('s_waitcnt lgkmcnt(0)')


def k_dma(j, tag):
    return (f'buffer_load_dwordx4 v{V_KD + j}, s[{S_K}:{S_K + 3}], s{S_TMP} offen offset:{1024 * j} lds', tag)


def v_dma(j, tag):
    return (f'buffer_load_dwordx4 v{V_VD + (j & 1)}, s[{S_V}:{S_V + 3}], s{S_TMP} offen offset:{1024 * j} lds', tag)


def slot_of(T):
    return (T + 1) % 4


def gen_setup(a, cfg):
    a('s_cmp_ge_u32 s2, 256')
    a('s_cbranch_scc1 L_attn_done')
    load_ptr(a, 4, KA_K)
    load_ptr(a, 6, KA_V)
    load_ptr(a, 40, KA_WQ)
    load_ptr(a, 42, KA_WS)
    a(f'v_mov_b32 v{V_TID}, v0')
    a(f'v_lshrrev_b32 v{V_TMP}, 6, v0')
    a('s_and_b32 s3, s2, 7')
    a('s_lshl_b32 s3, s3, 2')
    a(f's_bfe_u32 s{S_HEAD}, s2, 0x20003')
    a(f's_add_u32 s{S_HEAD}, s{S_HEAD}, s3')
    a(f's_lshr_b32 s{S_QBLK}, s2, 5')
    a(f'v_readfirstlane_b32 s{S_WAVE}, v{V_TMP}')
    a('s_waitcnt lgkmcnt(0)')
    a(f's_lshl_b32 s3, s{S_HEAD}, 19')
    make_srd(a, S_K, 4, 0, 524288, 's3')
    make_srd(a, S_V, 6, 0, 524288, 's3')
    a(f's_lshl_b32 s3, s{S_HEAD}, 8')
    a(f's_sub_u32 s{S_TMP}, {640 * 8192}, s3')
    make_srd(a, S_W, 40, 0, f's{S_TMP}', 's3')
    make_srd(a, S_X, 42, WS_XN, SZ_XN)
    make_srd(a, S_O, 42, WS_O, SZ_O)
    make_srd(a, S_M, 42, WS_MOD, SZ_MOD)
    a(f's_lshl_b32 s{S_M0B}, s{S_WAVE}, 12')
    T = V_TMP
    tid = V_TID
    a(f'v_lshlrev_b32 v{T}, 4, v{tid}')
    a(f'buffer_load_dwordx4 v[0:3], v{T}, s[{S_M}:{S_M + 3}], 0 offen', tag='mod')
    a(f'buffer_load_dwordx4 v[4:7], v{T}, s[{S_M}:{S_M + 3}], 0 offen offset:2560', tag='mod')
    a(f'v_and_b32 v8, 63, v{tid}')
    a('v_lshrrev_b32 v9, 4, v8')
    a('v_and_b32 v10, 15, v8')
    a(f's_lshl_b32 s3, s{S_WAVE}, 4')
    a('v_add_u32 v11, s3, v9')
    a('v_lshlrev_b32 v12, 2, v9')
    a('v_xor_b32 v12, v12, v10')
    a('v_lshlrev_b32 v12, 4, v12')
    a(f'v_lshl_add_u32 v{V_WD}, v11, 13, v12')
    item_dma_now(a, 0)
    a(f's_lshl_b32 s3, s{S_QBLK}, 4')
    a(f's_lshl_b32 s{S_TMP}, s{S_WAVE}, 2')
    a(f's_add_u32 s3, s3, s{S_TMP}')
    a('s_mul_i32 s3, s3, 20480')
    a('v_lshlrev_b32 v12, 4, v8')
    a(f'v_add_u32 v{V_XA}, s3, v12')
    for qb in range(4):
        a(f's_mov_b32 s{S_XOFF + qb}, {qb * 20480}')
    for U in range(4):
        a(xn_load(U), tag=('xn', U))
    item_dma_now(a, 1)
    for U in range(4, 16):
        a(xn_load(U), tag=('xn', U))
    for qb in range(4):
        a(f's_add_u32 s{S_XOFF + qb}, s{S_XOFF + qb}, 4096')
    for j in range(4):
        a(f'v_add_u32 v12, {4 * j}, v9')
        a('v_xor_b32 v12, v12, v10')
        a('v_lshlrev_b32 v12, 4, v12')
        a(f'v_lshl_add_u32 v{V_KD + j}, v11, 8, v12')
    for j in range(2):
        a(f'v_add_u32 v12, {4 * j}, v9')
        a('v_lshlrev_b32 v12, 1, v12')
        a('v_xor_b32 v12, v12, v10')
        a('v_lshlrev_b32 v12, 4, v12')
        a(f'v_lshl_add_u32 v{V_VD + j}, v11, 8, v12')
    a(f's_cmp_ge_u32 s{S_WAVE}, 2')
    a(f's_cselect_b32 s{S_ADJ}, 8192, 0')
    a(f's_sub_u32 s{S_MAX}, {524288 - 4096}, s{S_M0B}')
    a(f's_mov_b32 m0, s{S_M0B}')
    for j in range(4):
        a(f'v_subrev_u32 v{12 + j}, s{S_ADJ}, v{V_KD + j}')
    for j in range(4):
        a(f'buffer_load_dwordx4 v{12 + j}, s[{S_K}:{S_K + 3}], 0 offen offset:{1024 * j} lds', tag=('K', -1))
    a(f's_add_u32 m0, s{S_M0B}, {16384 * slot_of(0)}')
    a(f's_movk_i32 s{S_TMP}, 8192')
    for j in range(4):
        a(*k_dma(j, ('K', 0)))
    a('v_lshrrev_b32 v12, 2, v10')
    a('v_lshl_add_u32 v13, v9, 3, v12')
    a('v_lshlrev_b32 v13, 8, v13')
    a('v_and_b32 v14, 3, v10')
    a('v_lshl_add_u32 v13, v14, 4, v13')
    a('v_add_u32 v13, 98304, v13')
    for ds in range(4):
        a(f'v_xor_b32 v14, {ds}, v12')
        a(f'v_lshl_add_u32 v{V_WA + ds}, v14, 6, v13')
    a(f'v_lshlrev_b32 v{V_SBA}, 5, v9')
    a(f'v_add_u32 v{V_SBA}, {SB_OFF}, v{V_SBA}')
    for e in range(4):
        a(f'v_add_f32 v{4 + e}, 1.0, v{4 + e}')
    a('v_cvt_pk_bf16_f32 v12, v4, v5')
    a('v_cvt_pk_bf16_f32 v13, v6, v7')
    a('v_lshlrev_b32 v4, 16, v12')
    a('v_and_b32 v5, 0xffff0000, v12')
    a('v_lshlrev_b32 v6, 16, v13')
    a('v_and_b32 v7, 0xffff0000, v13')
    for e in range(4):
        a(f'v_mul_f32 v{e}, {fhex(QSCALE)}, v{e}')
    a(f'v_lshlrev_b32 v12, 4, v{tid}')
    a(f'v_add_u32 v12, {SB_OFF}, v12')
    a(f'v_cmp_gt_u32 vcc, 160, v{tid}')
    a('s_and_saveexec_b64 s[54:55], vcc')
    a('ds_write_b128 v12, v[4:7]')
    a('ds_write_b128 v12, v[0:3] offset:2560')
    a('s_mov_b64 exec, s[54:55]')
    for r in range(32):
        a(f'v_accvgpr_write_b32 a{VF(1, 0) + r}, 0')
    for r in range(4):
        a(f'v_accvgpr_write_b32 a{A_ZERO + r}, 0')
    a(f'v_mov_b32 v12, 0x3f803f80')
    for r in range(4):
        a(f'v_accvgpr_write_b32 a{A_ONE + r}, v12')
    for r in range(16):
        a(f'v_accvgpr_write_b32 a{A_L + r}, 0')
    for r in range(128):
        a(f'v_mov_b32 v{r}, 0')
    a(f's_add_u32 s{S_M0A}, s{S_M0B}, {65536 + 16384}')
    a(f's_add_u32 s{S_M0C}, s{S_M0B}, {65536 + 32768}')
    a(f's_mov_b32 s{S_WITEM}, {3 * 524288}')


def xn_load(U):
    kap, qb = U // 4, U % 4
    r = V_XN + (U % 16) * 4
    return (f'buffer_load_dwordx4 v[{r}:{r + 3}], v{V_XA}, s[{S_X}:{S_X + 3}], s{S_XOFF + qb} offen '
            f'offset:{(kap & 3) * 1024}' + LOAD_SC)


def item_dma_now(a, c):
    a(f's_add_u32 m0, s{S_M0B}, {65536 + ((c + 2) % 4) * 16384}')
    for j in range(4):
        a(f's_mov_b32 s{S_T1}, {c * 524288 + j * 31744}')
        a(f'buffer_load_dwordx4 v{V_WD}, s[{S_W}:{S_W + 3}], s{S_T1} offen offset:{1024 * j} lds', tag=('item', c))


def wf_reads(kap):
    out = []
    c = kap // 2
    for db in range(8):
        ds, e = db >> 1, db & 1
        for sel in range(2):
            off = (c & 1) * 16384 + (kap & 1) * 8192 + sel * 1024 + e * 8
            r = WF(kap & 1, db) + 2 * sel
            out.append(f'ds_read_b64_tr_b16 a[{r}:{r + 1}], v{V_WA + ds} offset:{off}')
    return out


def sb_reads(kap):
    base = V_SB + (kap & 1) * 16
    o = (kap & 3) * 128
    return [f'ds_read_b128 v[{base}:{base + 3}], v{V_SBA} offset:{o}',
            f'ds_read_b128 v[{base + 8}:{base + 11}], v{V_SBA} offset:{o + 2560}',
            f'ds_read_b128 v[{base + 4}:{base + 7}], v{V_SBA} offset:{o + 16}',
            f'ds_read_b128 v[{base + 12}:{base + 15}], v{V_SBA} offset:{o + 2576}']


def mod_x(U, el):
    kap = U // 4
    x = V_XN + (U % 16) * 4 + (el >> 1)
    sb = V_SB + (kap & 1) * 16
    t = V_T + ((el >> 1) & 1) * 2 + (el & 1)
    return (f'v_fma_mix_f32 v{t}, v{x}, v{sb + el}, v{sb + 8 + el} op_sel:[{el & 1},0,0] op_sel_hi:[1,0,0]')


def mod_c(U, d):
    t = V_T + (d & 1) * 2
    return f'v_cvt_pk_bf16_f32 v{V_H + (U & 1) * 4 + d}, v{t}, v{t + 1}'


def kf_reads(u):
    T, half = (u - 1) // 2, (u - 1) & 1
    out = []
    for kb in range(2):
        for ds in range(4):
            off = slot_of(T) * 16384 + (32 * half + 16 * kb) * 256
            r = KF(u & 1, kb, ds)
            out.append(f'ds_read_b128 a[{r}:{r + 3}], v{V_KA + ds} offset:{off}')
    return out


def vf_reads(u):
    T, half = (u - 1) // 2, (u - 1) & 1
    out = []
    for db in range(8):
        for sel in range(2):
            off = slot_of(T) * 16384 + (32 * half + 16 * sel) * 256
            r = VF(u & 1, db) + 2 * sel
            out.append(f'ds_read_b64_tr_b16 a[{r}:{r + 1}], v{V_VA + db} offset:{off}')
    return out


def gen_qproj(a, cfg, fused=False, mid_cb=None):
    st = Stream(a)
    a.wait_tag_vm(lambda t: t == ('item', 0))
    a('s_waitcnt lgkmcnt(0)')
    a('s_barrier')
    a(f's_add_u32 m0, s{S_M0B}, {65536 + 0 * 16384}')
    for j in range(4):
        a(f's_mov_b32 s{S_T1}, {2 * 524288 + j * 31744}')
        a(f'buffer_load_dwordx4 v{V_WD}, s[{S_W}:{S_W + 3}], s{S_T1} offen offset:{1024 * j} lds', tag=('item', 2))
    for r in sb_reads(0):
        a(r)
    for r in wf_reads(0):
        a(r)
    for d in range(4):
        a(mod_x(0, 2 * d))
        a(mod_x(0, 2 * d + 1))
        a(mod_c(0, d))
    a(mod_x(1, 0))
    a(mod_x(1, 1))
    a.wait_regs([f'a[{WF(0, 0)}:{WF(0, 0) + 31}]'])
    ts(a, cfg, 1)
    for kap in range(20):
        if kap == 12 and mid_cb is not None:
            a.mark('qpend')
            mid_cb()
        if kap % 4 == 0 and (kap < 12 or mid_cb is None):
            a.mark(f'qp{kap // 4}')
        if kap < 19:
            rd = wf_reads(kap + 1)
        else:
            rd = kf_reads(0) + vf_reads(0)
        sbr = sb_reads(kap + 1) if kap < 19 else []
        c = (kap + 1) // 2
        dma = []
        pre = []
        if kap % 2 == 1:
            item = c + 2
            if kap < 19:
                pre.append(lambda c=c: a.wait_tag_vm(lambda t: t == ('item', c)))
            else:
                pre.append(lambda: a.wait_tag_vm(lambda t: t in (('K', -1), ('V', -1))))
            pre.append('s_barrier')
            if kap % 4 == 3 and kap < 19:
                pre.append(f'v_add_u32 v{V_SBA}, 512, v{V_SBA}')
                for ds in range(4):
                    pre.append(f'v_xor_b32 v{V_WA + ds}, 0x8000, v{V_WA + ds}')
            if kap == 19:
                pass
            if item <= 9:
                m0s = S_M0A if kap % 4 == 1 else S_M0C
                for j in range(4):
                    dma.append(([f's_mov_b32 m0, s{m0s}'] if j == 0 else []) +
                               [f's_add_u32 s{S_T1}, s{S_WITEM}, {j * 31744}'] +
                               [(f'buffer_load_dwordx4 v{V_WD}, s[{S_W}:{S_W + 3}], s{S_T1} offen '
                                 f'offset:{1024 * j} lds', ('item', item))] +
                               ([f's_add_u32 s{S_WITEM}, s{S_WITEM}, 524288'] if j == 3 else []))
            elif item == 10:
                for j in range(4):
                    dma.append(([f's_add_u32 m0, s{S_M0B}, 65536'] if j == 0 else []) +
                               [f'v_subrev_u32 v{V_TMP}, s{S_ADJ}, v{V_VD + (j & 1)}',
                                (f'buffer_load_dwordx4 v{V_TMP}, s[{S_V}:{S_V + 3}], 0 offen offset:{1024 * j} lds',
                                 ('V', -1))])
            elif item == 11:
                for j in range(4):
                    dma.append(([f's_add_u32 m0, s{S_M0B}, {65536 + slot_of(0) * 16384}',
                                 f's_movk_i32 s{S_TMP}, 8192'] if j == 0 else []) + [v_dma(j, ('V', 0))])
            elif item == 12:
                for j in range(4):
                    dma.append(([f's_add_u32 m0, s{S_M0B}, {slot_of(1) * 16384}',
                                 f's_movk_i32 s{S_TMP}, {8192 + 16384}'] if j == 0 else []) + [k_dma(j, ('K', 1))])
                for j in range(4):
                    dma.append(([f's_add_u32 m0, s{S_M0B}, {65536 + slot_of(1) * 16384}', 's_nop 0'] if j == 0 else []) +
                               [v_dma(j, ('V', 1))])
        if kap == 19:
            gen_attn_addrs(a)
        nrd = len(rd)
        for qb in range(4):
            U = 4 * kap + qb
            B = vr(V_H + (U & 1) * 4, 4)
            gaps = [[] for _ in range(8)]
            have1 = U + 1 < 80
            have2 = U + 2 < 80
            cut = [0, 4, 8, 14, 16] if nrd == 16 else [0, 7, 14, 21, 24]
            my_rd = rd[cut[qb]:cut[qb + 1]]
            order = [0, 2, 4, 6, 1, 3, 5] if qb < 3 else [0, 1, 2]
            for n_, r in enumerate(my_rd):
                gaps[order[n_]].append(r)
            if qb < 2:
                for r in sbr[2 * qb:2 * qb + 2]:
                    gaps[1 + 2 * (sbr.index(r) & 1)].append(r)
            if dma:
                nd = len(dma) // 4
                for dd in dma[qb * nd:(qb + 1) * nd]:
                    gaps[5].extend(dd)
            if U + 16 < 80:
                gaps[7].append((xn_load(U + 16), ('xn', U + 16)))
            if have1:
                gaps[0].append(mod_c(U + 1, 0))
                gaps[1] += [mod_x(U + 1, 2), mod_x(U + 1, 3)]
                gaps[2].append(mod_c(U + 1, 1))
                gaps[3] += [mod_x(U + 1, 4), mod_x(U + 1, 5)]
                gaps[4].append(mod_c(U + 1, 2))
                gaps[5] += [mod_x(U + 1, 6), mod_x(U + 1, 7)]
                gaps[6].append(mod_c(U + 1, 3))
            if have2:
                gaps[7] += [mod_x(U + 2, 0), mod_x(U + 2, 1)]
            elif have1:
                gaps[7].append('s_nop 1')
            if qb == 0:
                gaps[0] = pre + gaps[0]
                a.wait_regs([f'a[{WF(kap & 1, 0)}:{WF(kap & 1, 0) + 31}]'])
            slots = []
            for db in range(8):
                d = vr(O(qb, db), 4)
                slots.append((mfma(d, ar(WF(kap & 1, db), 4), B, d), gaps[db]))
            st.run(slots)
        if kap % 4 == 3:
            for qb in range(4):
                a(f's_add_u32 s{S_XOFF + qb}, s{S_XOFF + qb}, 4096')
            a(f's_xor_b32 s{S_M0A}, s{S_M0A}, 32768')
            a(f's_xor_b32 s{S_M0C}, s{S_M0C}, 32768')
    if mid_cb is None:
        a.mark('qpend')


def gen_attn_addrs(a):
    t = V_TMP
    a(f'v_and_b32 v{t}, 15, v{V_TID}')
    a(f'v_bfe_u32 v{t + 1}, v{V_TID}, 4, 2')
    for ds in range(4):
        a(f'v_add_u32 v{t + 2}, {4 * ds}, v{t + 1}')
        a(f'v_xor_b32 v{t + 2}, v{t + 2}, v{t}')
        a(f'v_lshlrev_b32 v{t + 2}, 4, v{t + 2}')
        a(f'v_lshl_add_u32 v{V_KA + ds}, v{t}, 8, v{t + 2}')
    a(f'v_lshrrev_b32 v{t + 2}, 2, v{t}')
    a(f'v_lshl_add_u32 v{t + 2}, v{t + 1}, 2, v{t + 2}')
    a(f'v_and_b32 v{t + 3}, 7, v{t + 2}')
    a(f'v_lshlrev_b32 v{t + 2}, 8, v{t + 2}')
    a(f'v_and_b32 v{t + 4}, 3, v{t}')
    a(f'v_lshl_add_u32 v{t + 2}, v{t + 4}, 3, v{t + 2}')
    a(f'v_add_u32 v{t + 2}, 65536, v{t + 2}')
    for db in range(8):
        a(f'v_xor_b32 v{t + 4}, {db}, v{t + 3}')
        a(f'v_lshl_add_u32 v{V_VA + db}, v{t + 4}, 5, v{t + 2}')


def gen_p2(a, cfg):
    a.nop(8)
    t = V_X
    for qb in range(4):
        for ds in range(4):
            for d in range(4):
                src = O(qb, 2 * ds + (d >> 1)) + 2 * (d & 1)
                a(f'v_cvt_pk_bf16_f32 v{t + (d & 1)}, v{src}, v{src + 1}')
                a(f'v_accvgpr_write_b32 a{QF(qb, ds) + d}, v{t + (d & 1)}')
        z = ar(A_ZERO, 4)
        for hh in range(2):
            b = O(qb, 4 * hh)
            a(f'v_mfma_f32_32x32x16_bf16 v[{b}:{b + 15}], {z}, {z}, 0')
    for r in range(8):
        a(f'v_mov_b32 v{V_P + r}, 0')
    for r in range(4):
        a(f'v_mov_b32 v{V_L + r}, 0')
    a(f's_mov_b32 s{S_KOFF}, {2 * 16384 + 8192}')


def qk_slots(n):
    u, qb = n // 4, n % 4
    out = []
    for kb in range(2):
        d = vr(V_S + (n & 1) * 8 + kb * 4, 4)
        ch = []
        for ds in range(4):
            ch.append(mfma(d, ar(KF(u & 1, kb, ds), 4), ar(QF(qb, ds), 4), '0' if ds == 0 else d))
        out.append(ch)
    return out


def pv_slots(n):
    u, qb = n // 4, n % 4
    B = vr(V_P + (n & 1) * 4, 4)
    return [mfma(vr(O(qb, db), 4), ar(VF(u & 1, db), 4), B, vr(O(qb, db), 4)) for db in range(8)]


def l_slot(n):
    qb = n % 4
    d = ar(A_L + qb * 4, 4)
    return mfma(d, ar(A_ONE, 4), vr(V_P + (n & 1) * 4, 4), d)


def gen_main(a, cfg):
    lmode = cfg.get('lmode', 'add')
    st = Stream(a)
    a.wait_regs([f'a[{KF(0, 0, 0)}:{KF(0, 0, 0) + 31}]'])
    q = qk_slots(0)
    for m in q[0] + q[1]:
        a(m)
    a.nop(2)
    ts(a, cfg, 2)
    for n in range(256):
        s, qi = n // 4, n % 4
        if n % 32 == 0:
            a.mark(f'grp{n // 32}')
        T = s // 2
        kr = kf_reads(s + 1)
        vrd = vf_reads(s + 1)
        rd = {0: kr[0:6], 1: kr[6:8] + vrd[0:4], 2: vrd[4:10], 3: vrd[10:16]}[qi]
        p = n % 8
        T2 = T + 2
        pre_dma = []
        if p == 0:
            pre_dma = [f's_min_u32 s{S_TMP}, s{S_KOFF}, s{S_MAX}',
                       f's_add_u32 m0, s{S_M0B}, {slot_of(T2) * 16384}']
        elif p == 4:
            pre_dma = [f's_add_u32 m0, s{S_M0B}, {65536 + slot_of(T2) * 16384}']
        dma = k_dma(p, ('K', T2)) if p < 4 else v_dma(p - 4, ('V', T2))
        qk = qk_slots(n + 1)
        pv = pv_slots(n - 1)
        ms = qk[0] + pv[0:4] + qk[1] + pv[4:8]
        gaps = [[] for _ in range(17)]
        E = V_E
        S = V_S + (n & 1) * 8
        P = V_P + (n & 1) * 4
        qb = n % 4
        for j in range(8):
            gaps[2 * j].append(f'v_exp_f32 v{E + j}, v{S + j}')
        if lmode == 'add':
            pos = {0: 1, 1: 1, 2: 5, 3: 5, 4: 9, 5: 9}
            for k, r in enumerate(rd):
                gaps[pos[k]].append(r)
            gaps[13].append(dma)
            for j in range(8):
                gaps[2 * j + 1].append(f'v_add_f32 v{V_L + qb}, v{E + j}, v{V_L + qb}')
            for d in range(4):
                gaps[4 * d + 3].append(f'v_cvt_pk_bf16_f32 v{P + d}, v{E + 2 * d}, v{E + 2 * d + 1}')
        else:
            pos = {0: 1, 1: 1, 2: 5, 3: 5, 4: 9, 5: 9}
            for k, r in enumerate(rd):
                gaps[pos[k]].append(r)
            gaps[13].append(dma)
            for d in range(4):
                gaps[4 * d + 3].append(f'v_cvt_pk_bf16_f32 v{P + d}, v{E + 2 * d}, v{E + 2 * d + 1}')
        if p == 0:
            gaps[0] = [lambda T=T: a.wait_tag_vm(lambda t: t in (('K', T), ('V', T))), 's_barrier'] + gaps[0]
        if pre_dma:
            gaps[10] = [pre_dma[0]] + gaps[10]
            if len(pre_dma) > 1:
                gaps[12] = [pre_dma[1]] + gaps[12]
        if p == 7:
            gaps[14] = [f's_add_u32 s{S_KOFF}, s{S_KOFF}, 16384'] + gaps[14]
        slots = [(ms[k], gaps[k]) for k in range(16)]
        if lmode != 'add':
            slots.insert(8, (l_slot(n - 1), []))
        if qi == 3:
            a.wait_regs([f'a[{KF((s + 1) & 1, 0, 0)}:{KF((s + 1) & 1, 0, 0) + 31}]'])
        if qi == 1:
            m0_, g0_ = slots[3]
            slots[3] = (m0_, list(g0_) + [lambda s=s: a.wait_regs([f'a[{VF(s & 1, 0)}:{VF(s & 1, 0) + 31}]'])])
        st.run(slots)
    a.mark('grpend')
    a.nop(2)
    for m in pv_slots(255):
        a(m)
    if lmode != 'add':
        a(l_slot(255))


def gen_epilogue(a, cfg):
    lmode = cfg.get('lmode', 'add')
    t = V_X
    a.wait_all()
    a.nop(8)
    for qb in range(4):
        if lmode == 'add':
            sum_over_g(a, V_L + qb, t)
        else:
            a(f'v_accvgpr_read_b32 v{V_L + qb}, a{A_L + qb * 4}')
    a(f'v_min_f32 v{t}, v{V_L}, v{V_L + 1}')
    a(f'v_min_f32 v{t + 1}, v{V_L + 2}, v{V_L + 3}')
    a(f'v_min_f32 v{t}, v{t}, v{t + 1}')
    a(f'v_max_f32 v{t + 1}, v{V_L}, v{V_L + 1}')
    a(f'v_max3_f32 v{t + 1}, v{V_L + 2}, v{V_L + 3}, v{t + 1}')
    for qb in range(4):
        a(f'v_rcp_f32 v{V_L + qb}, v{V_L + qb}')
    a(f'v_and_b32 v{t + 2}, 63, v{V_TID}')
    a(f'v_lshlrev_b32 v{t + 2}, 4, v{t + 2}')
    a(f's_lshl_b32 s3, s{S_QBLK}, 4')
    a(f's_lshl_b32 s{S_TMP}, s{S_WAVE}, 2')
    a(f's_add_u32 s3, s3, s{S_TMP}')
    a('s_lshl_b32 s3, s3, 17')
    a(f's_lshl_b32 s{S_TMP}, s{S_HEAD}, 12')
    a(f's_add_u32 s3, s3, s{S_TMP}')
    ts(a, cfg, 3)
    for qb in range(4):
        a(f's_add_u32 s{S_T1}, s3, {qb * 131072}')
        for m in range(4):
            b = O(qb, 2 * m)
            dst = t + 4 + (m & 1) * 4
            for e in range(8):
                a(f'v_mul_f32 v{b + e}, v{b + e}, v{V_L + qb}')
            for d in range(4):
                a(f'v_cvt_pk_bf16_f32 v{dst + d}, v{b + 2 * d}, v{b + 2 * d + 1}')
            a(f'buffer_store_dwordx4 v[{dst}:{dst + 3}], v{t + 2}, s[{S_O}:{S_O + 3}], s{S_T1} offen offset:{1024 * m}' + STORE_SC)


def gen_ts_store(a, cfg, n):
    if not cfg.get('ts'):
        return
    a.wait_all()
    ts(a, cfg, n - 1)
    load_ptr(a, 4, KA_WS)
    a('s_waitcnt lgkmcnt(0)')
    make_srd(a, 8, 4, WS_TS, 1 << 20)
    a(f's_lshl_b32 s3, s2, 2')
    a(f's_add_u32 s3, s3, s{S_WAVE}')
    a(f's_lshl_b32 s3, s3, 6')
    a('v_mov_b32 v1, s3')
    for i in range(n):
        a(f'v_mov_b32 v2, s{S_TS + 4 * i}')
        a(f'v_mov_b32 v3, s{S_TS + 4 * i + 2}')
        a(f'buffer_store_dwordx2 v[2:3], v1, s[8:11], 0 offen offset:{8 * i}')
        a.nop(2)


def gen_attn(cfg, name='attn_kernel'):
    a = Asm()
    if cfg.get('ts'):
        a(f's_memtime s[{S_TS}:{S_TS + 1}]')
        a(f's_memrealtime s[{S_TS + 2}:{S_TS + 3}]')
    gen_setup(a, cfg)
    gen_qproj(a, cfg)
    gen_p2(a, cfg)
    gen_main(a, cfg)
    gen_epilogue(a, cfg)
    gen_ts_store(a, cfg, 5)
    a.label('L_attn_done')
    a('s_endpgm')
    errs = a.check()
    assert not errs, 'hazards in attn'
    lines = a.text().split('\n')
    lines, info1 = fold_loops(lines, 'qp', f's{S_CNT}', 'L_attn_qp')
    lines, info2 = fold_loops(lines, 'grp', f's{S_CNT}', 'L_attn_main')
    print('attn folds (start,count,groups):', info1, info2, 'waits', a.nwaits)
    return kernel_header(name) + '\n'.join(lines), kernel_desc(name, 512, 256)
```

```python
from common import *
import k_attn as A
import k_tail2 as TL
from k_prep import magic_div

LDS_BYTES = 163840
S_WAVE = 32
S_WS = 90
S_SYNC = 92
V_TID = 249
PREP_LDS = 137216
RL_STAGE = 139264
NSTAMP = 12


STAMPS = []


def stamp(a, cfg, name):
    if cfg.get('ts') and name in cfg['ts']:
        if name not in STAMPS:
            STAMPS.append(name)
        i = STAMPS.index(name)
        assert i < NSTAMP
        a('s_memtime s[88:89]')
        a('s_waitcnt lgkmcnt(0)')
        a(f's_mov_b32 s{64 + 2 * i}, s88')
        a('s_memrealtime s[88:89]')
        a('s_waitcnt lgkmcnt(0)')
        a(f's_mov_b32 s{65 + 2 * i}, s88')


def stamp_store(a, cfg):
    if not cfg.get('ts'):
        return
    a.wait_all()
    make_srd(a, 8, S_WS, WS_TS, 1 << 20)
    a('s_lshl_b32 s3, s2, 2')
    a(f's_add_u32 s3, s3, s{S_WAVE}')
    a('s_lshl_b32 s3, s3, 7')
    a('v_mov_b32 v1, s3')
    for i in range(NSTAMP):
        a(f'v_mov_b32 v2, s{64 + 2 * i}')
        a(f'v_mov_b32 v3, s{65 + 2 * i}')
        a(f'buffer_store_dwordx2 v[2:3], v1, s[8:11], 0 offen offset:{8 * i}')
        a.nop(2)


def sc(cfg):
    return ' sc1' if cfg.get('sc1_loads', 0) else ''


ST = ' sc1'


def arrive(a, k, after=None):
    if after is None:
        a('s_waitcnt vmcnt(0) lgkmcnt(0)')
    else:
        a('s_waitcnt lgkmcnt(0)')
        a('s_barrier')
        n0 = len(a.vmq)
        after()
        newer = a.vmq[n0:]
        a(f's_waitcnt vmcnt({len(newer)})')
    a('s_barrier')
    a(f's_cmp_lg_u32 s{S_WAVE}, 0')
    a(f's_cbranch_scc1 L_arr{k}')
    a('s_and_b32 s3, s2, 7')
    a('s_lshl_b32 s3, s3, 7')
    a(f's_add_u32 s3, s3, {k * 1024}')
    a('s_mov_b64 exec, 1')
    a('v_mov_b32 v254, s3')
    a('v_mov_b32 v255, 1')
    a(f'buffer_atomic_add v255, v254, s[{S_SYNC}:{S_SYNC + 3}], 0 offen sc1')
    a('s_mov_b64 exec, -1')
    a.label(f'L_arr{k}')
    a.vmq, a.lgq = (newer if after is not None else []), []


def wait_bar(a, k, drain=True):
    saved = list(a.vmq)
    a(f's_cmp_lg_u32 s{S_WAVE}, 0')
    a(f's_cbranch_scc1 L_pw{k}')
    a(f'v_and_b32 v254, 7, v{V_TID}')
    a('v_lshlrev_b32 v254, 7, v254')
    a('s_mov_b32 s3, 0')
    a.label(f'L_poll{k}')
    a(f'buffer_load_dword v255, v254, s[{S_SYNC}:{S_SYNC + 3}], 0 offen offset:{k * 1024} sc1')
    a('s_waitcnt vmcnt(0)')
    a('v_cmp_gt_u32 vcc, 32, v255')
    a('s_add_u32 s3, s3, 1')
    a('s_cmp_gt_u32 s3, 400000')
    a(f's_cbranch_scc1 L_pw{k}')
    a('s_cmp_eq_u64 vcc, 0')
    a(f's_cbranch_scc0 L_poll{k}')
    a.label(f'L_pw{k}')
    if drain:
        a('s_waitcnt vmcnt(0) lgkmcnt(0)')
        a('s_barrier')
        a.vmq, a.lgq = [], []
    else:
        a.vmq = saved
        a('s_barrier')


def role_ln(a, cfg):
    load_ptr(a, 4, KA_X)
    a('s_waitcnt lgkmcnt(0)')
    make_srd(a, 56, 4, 0, 2048 * 1280)
    a('v_and_b32 v1, 15, v0')
    a('v_bfe_u32 v2, v0, 4, 2')
    a('v_lshrrev_b32 v3, 6, v0')
    a('s_lshl_b32 s3, s2, 4')
    a('v_add_u32 v4, s3, v1')
    a('s_movk_i32 s3, 1280')
    a('v_mul_lo_u32 v4, v4, s3')
    a('v_mul_u32_u24 v5, 320, v3')
    a('v_lshlrev_b32 v6, 4, v2')
    a('v_add3_u32 v4, v4, v5, v6')
    for t in range(5):
        a(f'buffer_load_dwordx4 v[{20 + 4 * t}:{23 + 4 * t}], v4, s[56:59], 0 offen offset:{64 * t}')
    stamp(a, cfg, 'r_ld')
    a.wait_regs(['v[20:39]'])
    stamp(a, cfg, 'r_dat')
    make_srd(a, 56, S_WS, WS_XN, SZ_XN)
    for d in range(20):
        a(f'v_lshlrev_b32 v{40 + 2 * d}, 16, v{20 + d}')
        a(f'v_and_b32 v{41 + 2 * d}, 0xffff0000, v{20 + d}')
    a('v_lshlrev_b32 v7, 6, v3')
    a('v_lshl_add_u32 v7, v1, 2, v7')
    a(f'v_add_u32 v7, {PREP_LDS}, v7')
    a('v_lshlrev_b32 v8, 2, v1')
    a(f'v_add_u32 v8, {PREP_LDS}, v8')

    def reduce_round(acc, off):
        sum_over_g(a, acc, 11)
        a(f'ds_write_b32 v7, v{acc} offset:{off}')
        a('s_waitcnt lgkmcnt(0)')
        a('s_barrier')
        for wv in range(4):
            a(f'ds_read_b32 v{12 + wv}, v8 offset:{off + 64 * wv}')
        a('v_add_f32 v12, v12, v13')
        a('v_add_f32 v14, v14, v15')
        a(f'v_add_f32 v{acc}, v12, v14')

    a('v_add_f32 v10, v40, v41')
    a('v_add_f32 v9, v42, v43')
    for e in range(4, 40, 2):
        a(f'v_add_f32 v10, v10, v{40 + e}')
        a(f'v_add_f32 v9, v9, v{41 + e}')
    a('v_add_f32 v10, v10, v9')
    reduce_round(10, 0)
    a(f'v_mul_f32 v10, {fhex(1.0 / 640)}, v10')
    for e in range(40):
        a(f'v_sub_f32 v{40 + e}, v{40 + e}, v10')
    a('v_mul_f32 v10, v40, v40')
    a('v_mul_f32 v9, v41, v41')
    for e in range(2, 40, 2):
        a(f'v_fmac_f32 v10, v{40 + e}, v{40 + e}')
        a(f'v_fmac_f32 v9, v{41 + e}, v{41 + e}')
    a('v_add_f32 v10, v10, v9')
    reduce_round(10, 256)
    a(f'v_mov_b32 v9, {fhex(1e-5)}')
    a(f'v_fmac_f32 v9, {fhex(1.0 / 640)}, v10')
    a('v_rsq_f32 v9, v9')
    a.nop(1)
    a(f'v_mul_f32 v9, {fhex(QSCALE)}, v9')
    for e in range(40):
        a(f'v_mul_f32 v{40 + e}, v{40 + e}, v9')
    for d in range(20):
        a(f'v_cvt_pk_f16_f32 v{20 + d}, v{40 + 2 * d}, v{41 + 2 * d}')
    a('v_and_b32 v4, 63, v0')
    a('v_lshlrev_b32 v4, 4, v4')
    a('v_mul_u32_u24 v5, 5120, v3')
    a('v_add_u32 v4, v4, v5')
    a('v_add_u32 v6, 4096, v4')
    a('s_mul_i32 s3, s2, 20480')
    for t in range(4):
        a(f'buffer_store_dwordx4 v[{20 + 4 * t}:{23 + 4 * t}], v4, s[56:59], s3 offen offset:{1024 * t}{ST}')
    a(f'buffer_store_dwordx4 v[36:39], v6, s[56:59], s3 offen{ST}')


def role_gemv(a, cfg):
    load_ptr(a, 4, KA_C)
    load_ptr(a, 6, KA_WMOD)
    a('s_waitcnt lgkmcnt(0)')
    make_srd(a, 56, 4, 0, 1280)
    make_srd(a, 52, 6, 0, 640 * 7680)
    a('s_sub_u32 s3, s2, 128')
    a('s_and_b32 s44, s3, 7')
    a('s_mul_i32 s44, s44, 15')
    a('s_lshr_b32 s3, s3, 3')
    a('s_add_u32 s44, s44, s3')
    a('v_lshrrev_b32 v1, 2, v0')
    a('v_and_b32 v2, 3, v0')
    a('v_lshlrev_b32 v3, 1, v1')
    for p in range(10):
        a(f'buffer_load_ushort v{10 + p}, v3, s[56:59], 0 offen offset:{128 * p}')
    a('s_movk_i32 s3, 7680')
    a('v_mul_lo_u32 v4, v1, s3')
    a('v_lshl_add_u32 v4, v2, 4, v4')
    a('s_lshl_b32 s3, s44, 6')
    a('v_add_u32 v4, s3, v4')
    for p in range(10):
        a(f's_mov_b32 s3, {p * 64 * 7680}')
        a(f'buffer_load_dwordx4 v[{24 + 4 * p}:{27 + 4 * p}], v4, s[52:55], s3 offen')
    stamp(a, cfg, 'r_ld')
    a.wait_regs(['v[10:63]'])
    stamp(a, cfg, 'r_dat')
    make_srd(a, 56, S_WS, WS_MOD, SZ_MOD)
    for p in range(10):
        r = 10 + p
        a(f'v_lshlrev_b32 v{r}, 16, v{r}')
        a(f'v_mul_f32 v21, {fhex(-LOG2E)}, v{r}')
        a('v_exp_f32 v21, v21')
        a.nop(1)
        a('v_add_f32 v21, 1.0, v21')
        a('v_rcp_f32 v21, v21')
        a.nop(1)
        a(f'v_mul_f32 v21, v{r}, v21')
        a('v_cvt_pk_bf16_f32 v21, v21, v21')
        a(f'v_lshlrev_b32 v{r}, 16, v21')
    for p in range(10):
        for d in range(4):
            src = 24 + 4 * p + d
            a(f'v_lshlrev_b32 v21, 16, v{src}')
            a(f'v_and_b32 v22, 0xffff0000, v{src}')
            if p == 0:
                a(f'v_mul_f32 v{70 + 2 * d}, v21, v10')
                a(f'v_mul_f32 v{71 + 2 * d}, v22, v10')
            else:
                a(f'v_fmac_f32 v{70 + 2 * d}, v21, v{10 + p}')
                a(f'v_fmac_f32 v{71 + 2 * d}, v22, v{10 + p}')
    for rot in (8, 4):
        for e in range(8):
            a(f'v_add_f32_dpp v{70 + e}, v{70 + e}, v{70 + e} row_ror:{rot} row_mask:0xf bank_mask:0xf')
        a.nop(1)
    for e in range(8):
        sum_over_g(a, 70 + e, 21)
    a('v_lshrrev_b32 v6, 6, v0')
    a('v_lshlrev_b32 v6, 7, v6')
    a('v_lshl_add_u32 v6, v2, 5, v6')
    a(f'v_add_u32 v6, {PREP_LDS}, v6')
    a('s_mov_b64 exec, 15')
    a('ds_write_b128 v6, v[70:73]')
    a('ds_write_b128 v6, v[74:77] offset:16')
    a('s_mov_b64 exec, -1')
    a('s_waitcnt lgkmcnt(0)')
    a('s_barrier')
    a('v_and_b32 v6, 31, v0')
    a('v_lshlrev_b32 v6, 2, v6')
    a(f'v_add_u32 v7, {PREP_LDS}, v6')
    for wv in range(4):
        a(f'ds_read_b32 v{50 + wv}, v7 offset:{128 * wv}')
    a('v_add_f32 v50, v50, v51')
    a('v_add_f32 v52, v52, v53')
    a('v_add_f32 v50, v50, v52')
    a('v_cvt_pk_bf16_f32 v50, v50, v50')
    a('v_lshlrev_b32 v50, 16, v50')
    a('s_lshl_b32 s3, s44, 7')
    a('v_cmp_gt_u32 vcc, 32, v0')
    a('s_and_saveexec_b64 s[46:47], vcc')
    a(f'buffer_store_dword v50, v6, s[56:59], s3 offen{ST}')
    a('s_mov_b64 exec, s[46:47]')


def role_init(a, cfg):
    stamp(a, cfg, 'r_ld')
    stamp(a, cfg, 'r_dat')
    a('s_cmp_lg_u32 s2, 255')
    a('s_cbranch_scc1 L_noinit')
    a('v_lshlrev_b32 v1, 4, v0')
    for r in range(4):
        a(f'v_mov_b32 v{4 + r}, 0')
    a(f'buffer_store_dwordx4 v[4:7], v1, s[{S_SYNC}:{S_SYNC + 3}], 0 offen{ST}')
    a('s_waitcnt vmcnt(0)')
    a('s_barrier')
    a('v_mov_b32 v1, 0')
    a('v_mov_b32 v2, 1')
    a('s_mov_b64 exec, 1')
    a(f'buffer_store_dword v2, v1, s[56:59], 0 offen{ST}')
    a('s_mov_b64 exec, -1')
    a.label('L_noinit')


def wait_init(a):
    a(f's_cmp_lg_u32 s{S_WAVE}, 0')
    a('s_cbranch_scc1 L_wi_done')
    load_ptr(a, 4, KA_DBG)
    a('s_waitcnt lgkmcnt(0)')
    make_srd(a, 56, 4, 0, 256)
    a('v_mov_b32 v254, 0')
    a('s_mov_b32 s3, 0')
    a.label('L_wi_poll')
    a('buffer_load_dword v255, v254, s[56:59], 0 offen sc1')
    a('s_waitcnt vmcnt(0)')
    a('v_cmp_ne_u32 vcc, 1, v255')
    a('s_add_u32 s3, s3, 1')
    a('s_cmp_gt_u32 s3, 400000')
    a('s_cbranch_scc1 L_wi_done')
    a('s_cmp_eq_u64 vcc, 0')
    a('s_cbranch_scc0 L_wi_poll')
    a.label('L_wi_done')


def attn_prefetch(a, cfg):
    load_ptr(a, 4, KA_K)
    load_ptr(a, 6, KA_V)
    load_ptr(a, 40, KA_WQ)
    a('s_and_b32 s3, s2, 7')
    a('s_lshl_b32 s3, s3, 2')
    a(f's_bfe_u32 s{A.S_HEAD}, s2, 0x20003')
    a(f's_add_u32 s{A.S_HEAD}, s{A.S_HEAD}, s3')
    a(f's_lshr_b32 s{A.S_QBLK}, s2, 5')
    a(f's_lshl_b32 s{A.S_M0B}, s{S_WAVE}, 12')
    g, i, r16, t = 200, 201, 202, 203
    a(f'v_bfe_u32 v{g}, v{V_TID}, 4, 2')
    a(f'v_and_b32 v{i}, 15, v{V_TID}')
    a(f's_lshl_b32 s3, s{S_WAVE}, 4')
    a(f'v_add_u32 v{r16}, s3, v{g}')
    a(f'v_lshlrev_b32 v{t}, 2, v{g}')
    a(f'v_xor_b32 v{t}, v{t}, v{i}')
    a(f'v_lshlrev_b32 v{t}, 4, v{t}')
    a(f'v_lshl_add_u32 v{A.V_WD}, v{r16}, 13, v{t}')
    for j in range(4):
        a(f'v_add_u32 v{t}, {4 * j}, v{g}')
        a(f'v_xor_b32 v{t}, v{t}, v{i}')
        a(f'v_lshlrev_b32 v{t}, 4, v{t}')
        a(f'v_lshl_add_u32 v{A.V_KD + j}, v{r16}, 8, v{t}')
    for j in range(2):
        a(f'v_add_u32 v{t}, {4 * j}, v{g}')
        a(f'v_lshlrev_b32 v{t}, 1, v{t}')
        a(f'v_xor_b32 v{t}, v{t}, v{i}')
        a(f'v_lshlrev_b32 v{t}, 4, v{t}')
        a(f'v_lshl_add_u32 v{A.V_VD + j}, v{r16}, 8, v{t}')
    a('s_waitcnt lgkmcnt(0)')
    a(f's_lshl_b32 s3, s{A.S_HEAD}, 19')
    make_srd(a, A.S_K, 4, 0, 524288, 's3')
    make_srd(a, A.S_V, 6, 0, 524288, 's3')
    a(f's_lshl_b32 s3, s{A.S_HEAD}, 8')
    a(f's_sub_u32 s{A.S_TMP}, {640 * 8192}, s3')
    make_srd(a, A.S_W, 40, 0, f's{A.S_TMP}', 's3')
    A.item_dma_now(a, 0)
    A.item_dma_now(a, 1)
    if cfg.get('touch', 1):
        a(f's_mul_i32 s3, s{A.S_QBLK}, 160')
        a(f'v_add_u32 v{t}, s3, v{V_TID}')
        a(f'v_min_u32 v{t}, 1279, v{t}')
        a(f'v_and_b32 v208, 1, v{t}')
        a(f'v_lshrrev_b32 v{t}, 1, v{t}')
        a(f'v_lshlrev_b32 v{t}, 13, v{t}')
        a(f'v_lshl_add_u32 v{t}, v208, 7, v{t}')
        a(f'buffer_load_dword v209, v{t}, s[{A.S_W}:{A.S_W + 3}], 0 offen')
    if cfg.get('touch_kv', 0):
        a(f's_lshr_b32 s3, s{S_WAVE}, 1')
        a('s_lshl_b32 s3, s3, 9')
        a(f's_lshl_b32 s{A.S_TMP}, s{A.S_QBLK}, 6')
        a(f's_add_u32 s3, s3, s{A.S_TMP}')
        a(f'v_and_b32 v{t}, 63, v{V_TID}')
        a(f'v_add_u32 v{t}, s3, v{t}')
        a(f'v_lshlrev_b32 v{t}, 7, v{t}')
        a(f's_bitcmp1_b32 s{S_WAVE}, 0')
        a(f's_cselect_b32 s40, s{A.S_V}, s{A.S_K}')
        a(f's_cselect_b32 s41, s{A.S_V + 1}, s{A.S_K + 1}')
        a('s_mov_b32 s42, 524288')
        a('s_mov_b32 s43, 0x20000')
        a(f'buffer_load_dword v210, v{t}, s[40:43], 0 offen')
    a(f's_cmp_ge_u32 s{S_WAVE}, 2')
    a(f's_cselect_b32 s{A.S_ADJ}, 8192, 0')
    a(f's_sub_u32 s{A.S_MAX}, {524288 - 4096}, s{A.S_M0B}')
    a(f's_mov_b32 m0, s{A.S_M0B}')
    for j in range(4):
        a(f'v_subrev_u32 v{204 + j}, s{A.S_ADJ}, v{A.V_KD + j}')
    for j in range(4):
        a(f'buffer_load_dwordx4 v{204 + j}, s[{A.S_K}:{A.S_K + 3}], 0 offen offset:{1024 * j} lds', tag=('K', -1))
    a(f's_add_u32 m0, s{A.S_M0B}, {16384 * A.slot_of(0)}')
    a(f's_movk_i32 s{A.S_TMP}, 8192')
    for j in range(4):
        a(*A.k_dma(j, ('K', 0)))


RL_SRD = 56
RL_DOFF = 96


def rl_issue(a, which, vt=250):
    R = RL_SRD
    M = 128 if which == 'wo' else 54
    load_ptr(a, 4, KA_WO if which == 'wo' else KA_W2)
    if which == 'wo':
        a('s_lshl_b32 s42, s2, 2')
        a(f's_add_u32 s42, s42, s{S_WAVE}')
    else:
        a('s_mul_i32 s42, s2, 3')
        a(f's_add_u32 s42, s42, s{S_WAVE}')
        a('s_sub_u32 s42, s42, 1')
    a('s_lshr_b32 s43, s42, 3')
    a('s_and_b32 s42, s42, 7')
    a('s_mul_i32 s41, s43, 40960')
    a('s_mul_i32 s60, s42, 160')
    a('s_add_u32 s41, s41, s60')
    a('s_mul_i32 s60, s42, 5')
    a(f's_mul_i32 s60, s60, {M}')
    a('s_add_u32 s60, s60, s43')
    a(f's_lshl_b32 s{RL_DOFF}, s60, 10')
    a(f's_mul_i32 s61, s{S_WAVE}, 5120')
    a(f'v_and_b32 v{vt}, 63, v{V_TID}')
    a('s_waitcnt lgkmcnt(0)')
    make_srd(a, R, 4, 0, (4096 if which == 'wo' else 1728) * 1280)
    for j in range(5):
        if j:
            a(f'v_add_u32 v{vt}, 64, v{vt}')
        a(f'v_mul_u32_u24 v{vt + 1}, 6554, v{vt}')
        a(f'v_lshrrev_b32 v{vt + 1}, 16, v{vt + 1}')
        a(f'v_mul_u32_u24 v{vt + 2}, 10, v{vt + 1}')
        a(f'v_sub_u32 v{vt + 2}, v{vt}, v{vt + 2}')
        a(f'v_mul_u32_u24 v{vt + 1}, 1280, v{vt + 1}')
        a(f'v_lshl_add_u32 v{vt + 1}, v{vt + 2}, 4, v{vt + 1}')
        a(f's_add_u32 m0, s61, {RL_STAGE + 1024 * j}')
        a.nop(1)
        a(f'buffer_load_dwordx4 v{vt + 1}, s[{R}:{R + 3}], s41 offen lds', tag='rl')


def rl_finish(a, which, AB, vt=250):
    R = RL_SRD
    M = 128 if which == 'wo' else 54
    if which == 'wo':
        make_srd(a, R, S_WS, WS_WOF, SZ_WOF)
    else:
        make_srd(a, R, S_WS, WS_W2F, SZ_W2F)
    a(f'v_and_b32 v{vt + 1}, 63, v{V_TID}')
    a(f'v_lshlrev_b32 v{vt}, 4, v{vt + 1}')
    a(f'v_lshrrev_b32 v{vt + 2}, 4, v{vt + 1}')
    a(f'v_bfe_u32 v{vt + 3}, v{vt + 1}, 2, 2')
    a(f'v_lshl_add_u32 v{vt + 2}, v{vt + 2}, 2, v{vt + 3}')
    a(f'v_mul_u32_u24 v{vt + 2}, 160, v{vt + 2}')
    a(f'v_and_b32 v{vt + 3}, 3, v{vt + 1}')
    a(f'v_lshl_add_u32 v{vt + 2}, v{vt + 3}, 3, v{vt + 2}')
    a(f's_mul_i32 s3, s{S_WAVE}, 5120')
    a(f's_add_u32 s3, s3, {RL_STAGE}')
    a(f'v_add_u32 v{vt + 2}, s3, v{vt + 2}')
    for c in range(5):
        for sel in range(2):
            b = AB + 4 * c + 2 * sel
            a(f'ds_read_b64_tr_b16 a[{b}:{b + 1}], v{vt + 2} offset:{32 * c + 2560 * sel}')
    a(f's_mov_b32 s3, s{RL_DOFF}')
    for c in range(5):
        b = AB + 4 * c
        a(f'buffer_store_dwordx4 a[{b}:{b + 3}], v{vt}, s[{R}:{R + 3}], s3 offen{ST}')
        if c < 4:
            a(f's_add_u32 s3, s3, {M * 1024}')


def w2_job(a):
    saved = (list(a.vmq), list(a.lgq))
    a(f's_cmp_eq_u32 s{S_WAVE}, 0')
    a('s_cbranch_scc1 L_w2_skip')
    a('s_cmp_ge_u32 s2, 144')
    a('s_cbranch_scc1 L_w2_skip')
    a.vmq, a.lgq = [], []
    rl_issue(a, 'w2')
    a('s_waitcnt vmcnt(0)')
    rl_finish(a, 'w2', 0)
    a.label('L_w2_skip')
    a.vmq, a.lgq = saved


def side_jobs(cfg):
    a = Asm()
    a.label('L_side0')
    rl_issue(a, 'wo')
    a('s_branch L_side_ret')
    errs = a.check()
    assert not errs
    return a.text().split('\n')


def attn_setup2(a, cfg):
    make_srd(a, A.S_X, S_WS, WS_XN, SZ_XN)
    make_srd(a, A.S_O, S_WS, WS_O, SZ_O)
    make_srd(a, A.S_M, S_WS, WS_MOD, SZ_MOD)
    T = A.V_TMP
    tid = V_TID
    a(f'v_lshlrev_b32 v{T}, 4, v{tid}')
    a(f'buffer_load_dwordx4 v[0:3], v{T}, s[{A.S_M}:{A.S_M + 3}], 0 offen{sc(cfg)}', tag='mod')
    a(f'buffer_load_dwordx4 v[4:7], v{T}, s[{A.S_M}:{A.S_M + 3}], 0 offen offset:2560{sc(cfg)}', tag='mod')
    a(f'v_and_b32 v8, 63, v{tid}')
    a('v_lshrrev_b32 v9, 4, v8')
    a('v_and_b32 v10, 15, v8')
    a(f's_lshl_b32 s3, s{A.S_QBLK}, 4')
    a(f's_lshl_b32 s{A.S_TMP}, s{S_WAVE}, 2')
    a(f's_add_u32 s3, s3, s{A.S_TMP}')
    a('s_mul_i32 s3, s3, 20480')
    a('v_lshlrev_b32 v12, 4, v8')
    a(f'v_add_u32 v{A.V_XA}, s3, v12')
    for qb in range(4):
        a(f's_mov_b32 s{A.S_XOFF + qb}, {qb * 20480}')


def attn_setup3(a, cfg):
    for U in range(16):
        a(A.xn_load(U), tag=('xn', U))
    for qb in range(4):
        a(f's_add_u32 s{A.S_XOFF + qb}, s{A.S_XOFF + qb}, 4096')
    tid = V_TID
    a('v_lshrrev_b32 v12, 2, v10')
    a('v_lshl_add_u32 v13, v9, 3, v12')
    a('v_lshlrev_b32 v13, 8, v13')
    a('v_and_b32 v14, 3, v10')
    a('v_lshl_add_u32 v13, v14, 4, v13')
    a('v_add_u32 v13, 98304, v13')
    for ds in range(4):
        a(f'v_xor_b32 v14, {ds}, v12')
        a(f'v_lshl_add_u32 v{A.V_WA + ds}, v14, 6, v13')
    a(f'v_lshlrev_b32 v{A.V_SBA}, 5, v9')
    a(f'v_add_u32 v{A.V_SBA}, {A.SB_OFF}, v{A.V_SBA}')
    for e in range(4):
        a(f'v_add_f32 v{4 + e}, 1.0, v{4 + e}')
    a('v_cvt_pk_bf16_f32 v12, v4, v5')
    a('v_cvt_pk_bf16_f32 v13, v6, v7')
    a('v_lshlrev_b32 v4, 16, v12')
    a('v_and_b32 v5, 0xffff0000, v12')
    a('v_lshlrev_b32 v6, 16, v13')
    a('v_and_b32 v7, 0xffff0000, v13')
    for e in range(4):
        a(f'v_mul_f32 v{e}, {fhex(QSCALE)}, v{e}')
    a(f'v_lshlrev_b32 v12, 4, v{tid}')
    a(f'v_add_u32 v12, {A.SB_OFF}, v12')
    a(f'v_cmp_gt_u32 vcc, 160, v{tid}')
    a('s_and_saveexec_b64 s[54:55], vcc')
    a('ds_write_b128 v12, v[4:7]')
    a('ds_write_b128 v12, v[0:3] offset:2560')
    a('s_mov_b64 exec, s[54:55]')
    for r in range(128):
        a(f'v_mov_b32 v{r}, 0')
    a(f's_add_u32 s{A.S_M0A}, s{A.S_M0B}, {65536 + 16384}')
    a(f's_add_u32 s{A.S_M0C}, s{A.S_M0B}, {65536 + 32768}')
    a(f's_mov_b32 s{A.S_WITEM}, {3 * 524288}')


def attn_consts(a):
    for r in range(32):
        a(f'v_accvgpr_write_b32 a{A.VF(1, 0) + r}, 0')
    for r in range(4):
        a(f'v_accvgpr_write_b32 a{A.A_ZERO + r}, 0')
    a('v_mov_b32 v12, 0x3f803f80')
    for r in range(4):
        a(f'v_accvgpr_write_b32 a{A.A_ONE + r}, v12')
    for r in range(16):
        a(f'v_accvgpr_write_b32 a{A.A_L + r}, 0')


def gen_fused(cfg, name):
    del STAMPS[:]
    cfa = dict(cfg)
    cfa.pop('ts', None)
    A.LOAD_SC = sc(cfg)
    A.STORE_SC = ST
    TL.LOAD_SC = sc(cfg)
    TL.STORE_SC = ST
    a = Asm()
    a('s_cmp_ge_u32 s2, 256')
    a('s_cbranch_scc1 L_done')
    load_ptr(a, S_WS, KA_WS)
    load_ptr(a, 6, KA_DBG)
    a(f'v_mov_b32 v{V_TID}, v0')
    a('v_lshrrev_b32 v1, 6, v0')
    a.nop(1)
    a(f'v_readfirstlane_b32 s{S_WAVE}, v1')
    stamp(a, cfg, 'entry')
    a('s_waitcnt lgkmcnt(0)')
    make_srd(a, S_SYNC, S_WS, WS_SYNC, SZ_SYNC)
    make_srd(a, 56, 6, 0, 256)
    a('s_cmp_ge_u32 s2, 248')
    a('s_cbranch_scc1 L_role_init')
    a('s_cmp_ge_u32 s2, 128')
    a('s_cbranch_scc1 L_role_gemv')
    role_ln(a, cfg)
    a('s_branch L_role_done')
    a.label('L_role_gemv')
    a.vmq, a.lgq = [], []
    role_gemv(a, cfg)
    a('s_branch L_role_done')
    a.label('L_role_init')
    a.vmq, a.lgq = [], []
    role_init(a, cfg)
    a.label('L_role_done')
    a.vmq, a.lgq = [], []
    wait_init(a)
    stamp(a, cfg, 'prep')
    arrive(a, 0)
    stamp(a, cfg, 'arr0')
    attn_prefetch(a, cfg)
    stamp(a, cfg, 'r_pf')
    attn_consts(a)
    wait_bar(a, 0, drain=False)
    stamp(a, cfg, 'bar0')
    attn_setup2(a, cfg)
    attn_setup3(a, cfg)
    A.gen_qproj(a, cfa, fused=True)
    stamp(a, cfg, 'qproj')
    A.gen_p2(a, cfa)
    A.gen_main(a, cfa)
    stamp(a, cfg, 'main')
    A.gen_epilogue(a, cfa)
    rl_finish(a, 'wo', 216)
    stamp(a, cfg, 'aepi')
    arrive(a, 1)
    stamp(a, cfg, 'arr1')
    TL.splitk_phase(a, cfg, 'oproj', lambda: (w2_job(a), wait_bar(a, 1, drain=False)), lambda i: stamp(a, cfg, i))
    stamp(a, cfg, 'opepi')
    arrive(a, 2, after=lambda: TL.ffn1_a_dma(a, (0, 1, 2)))
    stamp(a, cfg, 'arr2')
    TL.ffn1_phase(a, cfg, lambda: wait_bar(a, 2), lambda i: stamp(a, cfg, i))
    stamp(a, cfg, 'f1epi')
    arrive(a, 3)
    stamp(a, cfg, 'arr3')
    TL.splitk_phase(a, cfg, 'ffn2', lambda: wait_bar(a, 3, drain=False), lambda i: stamp(a, cfg, i))
    stamp(a, cfg, 'end')
    stamp_store(a, cfg)
    a.label('L_done')
    a('s_endpgm')
    errs = a.check()
    assert not errs, 'hazards'
    lines = a.text().split('\n')
    lines, i1 = fold_loops(lines, 'qp', f's{A.S_CNT}', 'L_attn_qp')
    lines, i2 = fold_loops(lines, 'grp', f's{A.S_CNT}', 'L_attn_main')
    k = lines.index('    s_cbranch_scc1 L_attn_main')
    assert lines[k - 2].strip().startswith('s_sub_u32') and lines[k - 1].strip().startswith('s_cmp_lg')
    hook = []
    hook += [f'    s_cmp_eq_u32 s{A.S_CNT}, {cfg.get("side_at", 4)}', '    s_cbranch_scc1 L_side0']
    hook += ['L_side_ret:']
    lines[k - 2:k - 2] = hook
    e = lines.index('L_done:')
    lines[e:e] = ['    s_endpgm'] + side_jobs(cfg)
    lines, i3 = fold_loops(lines, 'sk', 's43', 'L_oproj_loop')
    print('folds', i1, i2, i3)
    lines.insert(0, '; STAMPS: ' + ','.join(STAMPS))
    return kernel_header(name) + '\n'.join(lines), kernel_desc(name, 512, 256, nsgpr=102)
```

```python
from common import *

N_GEMV = 240
N_LN = 128
JOBS_PER_WAVE = 2
N_JOBS = 1280 + 540 + 540
N_RELAY = (N_JOBS + 4 * JOBS_PER_WAVE - 1) // (4 * JOBS_PER_WAVE)
PREP_GRID = N_GEMV + N_LN + N_RELAY
PREP_LDS = 32768


def magic_div(a, q, n, d, tmp):
    m = (1 << 32) // d + 1
    a(f's_mov_b32 s{tmp}, {hex(m)}')
    a(f's_mul_hi_u32 s{q}, s{n}, s{tmp}')


def gen_gemv(a):
    make_srd(a, 12, 4, 0, 1280)
    make_srd(a, 16, 6, 0, 640 * 7680)
    make_srd(a, 20, 8, WS_MOD, SZ_MOD)
    a('s_and_b32 s24, s2, 7')
    a('s_mul_i32 s24, s24, 30')
    a('s_lshr_b32 s25, s2, 3')
    a('s_add_u32 s24, s24, s25')
    a('v_lshrrev_b32 v1, 1, v0')
    a('v_and_b32 v2, 1, v0')
    a('v_lshlrev_b32 v3, 1, v1')
    for p in range(5):
        a(f'buffer_load_ushort v{10 + p}, v3, s[12:15], 0 offen offset:{256 * p}')
    a('s_mov_b32 s26, 7680')
    a('v_mul_lo_u32 v4, v1, s26')
    a('v_lshlrev_b32 v5, 4, v2')
    a('v_add_u32 v4, v4, v5')
    a('s_lshl_b32 s27, s24, 5')
    a('v_add_u32 v4, s27, v4')
    for p in range(5):
        a(f's_mov_b32 s{28 + p}, {p * 128 * 7680}')
    for p in range(5):
        a(f'buffer_load_dwordx4 v[{20 + 4 * p}:{23 + 4 * p}], v4, s[16:19], s{28 + p} offen')
    for p in range(5):
        r = 10 + p
        a(f'v_lshlrev_b32 v{r}, 16, v{r}')
        a(f'v_mul_f32 v{15}, {fhex(-LOG2E)}, v{r}')
        a('v_exp_f32 v15, v15')
        a.nop(1)
        a('v_add_f32 v15, 1.0, v15')
        a('v_rcp_f32 v15, v15')
        a.nop(1)
        a(f'v_mul_f32 v15, v{r}, v15')
        a('v_cvt_pk_bf16_f32 v15, v15, v15')
        a(f'v_lshlrev_b32 v{r}, 16, v15')
    for p in range(5):
        for d in range(4):
            src = 20 + 4 * p + d
            a(f'v_lshlrev_b32 v16, 16, v{src}')
            a(f'v_and_b32 v17, 0xffff0000, v{src}')
            if p == 0:
                a(f'v_mul_f32 v{40 + 2 * d}, v16, v10')
                a(f'v_mul_f32 v{41 + 2 * d}, v17, v10')
            else:
                a(f'v_fmac_f32 v{40 + 2 * d}, v16, v{10 + p}')
                a(f'v_fmac_f32 v{41 + 2 * d}, v17, v{10 + p}')
    for rot in (8, 4, 2):
        for e in range(8):
            a(f'v_add_f32_dpp v{40 + e}, v{40 + e}, v{40 + e} row_ror:{rot} row_mask:0xf bank_mask:0xf')
        a.nop(1)
    for e in range(8):
        sum_over_g(a, 40 + e, 16)
    a('v_lshrrev_b32 v6, 6, v0')
    a('v_lshlrev_b32 v6, 6, v6')
    a('v_lshlrev_b32 v7, 5, v2')
    a('v_add_u32 v6, v6, v7')
    a('s_mov_b64 exec, 3')
    a('ds_write_b128 v6, v[40:43]')
    a('ds_write_b128 v6, v[44:47] offset:16')
    a('s_mov_b64 exec, -1')
    a('s_waitcnt lgkmcnt(0)')
    a('s_barrier')
    a('v_cmp_gt_u32 vcc, 16, v0')
    a('s_and_saveexec_b64 s[34:35], vcc')
    a('s_cbranch_execz L_prep_done')
    a('v_lshlrev_b32 v6, 2, v0')
    for wv in range(4):
        a(f'ds_read_b32 v{50 + wv}, v6 offset:{64 * wv}')
    a('v_add_f32 v50, v50, v51')
    a('v_add_f32 v52, v52, v53')
    a('v_add_f32 v50, v50, v52')
    a('v_cvt_pk_bf16_f32 v50, v50, v50')
    a('v_lshlrev_b32 v50, 16, v50')
    a('s_lshl_b32 s27, s24, 6')
    a('v_add_u32 v6, s27, v6')
    a('buffer_store_dword v50, v6, s[20:23], 0 offen')
    a('s_branch L_prep_done')


def gen_ln(a):
    make_srd(a, 12, 4, 0, 2048 * 1280)
    make_srd(a, 16, 8, WS_XN, SZ_XN)
    a(f's_sub_u32 s24, s2, {N_GEMV}')
    a('v_and_b32 v1, 15, v0')
    a('v_bfe_u32 v2, v0, 4, 2')
    a('v_lshrrev_b32 v3, 6, v0')
    a('s_lshl_b32 s25, s24, 4')
    a('v_add_u32 v4, s25, v1')
    a('s_movk_i32 s26, 1280')
    a('v_mul_lo_u32 v4, v4, s26')
    a('v_mul_u32_u24 v5, 320, v3')
    a('v_lshlrev_b32 v6, 4, v2')
    a('v_add3_u32 v4, v4, v5, v6')
    for t in range(5):
        a(f'buffer_load_dwordx4 v[{20 + 4 * t}:{23 + 4 * t}], v4, s[12:15], 0 offen offset:{64 * t}')
    for d in range(20):
        a(f'v_lshlrev_b32 v{40 + 2 * d}, 16, v{20 + d}')
        a(f'v_and_b32 v{41 + 2 * d}, 0xffff0000, v{20 + d}')
    a('v_lshlrev_b32 v7, 6, v3')
    a('v_lshl_add_u32 v7, v1, 2, v7')
    a('v_lshlrev_b32 v8, 2, v1')

    def reduce_round(acc, off):
        sum_over_g(a, acc, 11)
        a(f'ds_write_b32 v7, v{acc} offset:{off}')
        a('s_waitcnt lgkmcnt(0)')
        a('s_barrier')
        for wv in range(4):
            a(f'ds_read_b32 v{12 + wv}, v8 offset:{off + 64 * wv}')
        a('v_add_f32 v12, v12, v13')
        a('v_add_f32 v14, v14, v15')
        a(f'v_add_f32 v{acc}, v12, v14')

    a('v_add_f32 v10, v40, v41')
    a('v_add_f32 v9, v42, v43')
    for e in range(4, 40, 2):
        a(f'v_add_f32 v10, v10, v{40 + e}')
        a(f'v_add_f32 v9, v9, v{41 + e}')
    a('v_add_f32 v10, v10, v9')
    reduce_round(10, 0)
    a(f'v_mul_f32 v10, {fhex(1.0 / 640)}, v10')
    for e in range(40):
        a(f'v_sub_f32 v{40 + e}, v{40 + e}, v10')
    a('v_mul_f32 v10, v40, v40')
    a('v_mul_f32 v9, v41, v41')
    for e in range(2, 40, 2):
        a(f'v_fmac_f32 v10, v{40 + e}, v{40 + e}')
        a(f'v_fmac_f32 v9, v{41 + e}, v{41 + e}')
    a('v_add_f32 v10, v10, v9')
    reduce_round(10, 256)
    a(f'v_mov_b32 v9, {fhex(1e-5)}')
    a(f'v_fmac_f32 v9, {fhex(1.0 / 640)}, v10')
    a('v_rsq_f32 v9, v9')
    a.nop(1)
    a(f'v_mul_f32 v9, {fhex(QSCALE)}, v9')
    for e in range(40):
        a(f'v_mul_f32 v{40 + e}, v{40 + e}, v9')
    for d in range(20):
        a(f'v_cvt_pk_f16_f32 v{20 + d}, v{40 + 2 * d}, v{41 + 2 * d}')
    a('v_and_b32 v4, 63, v0')
    a('v_lshlrev_b32 v4, 4, v4')
    a('v_mul_u32_u24 v5, 5120, v3')
    a('v_add_u32 v4, v4, v5')
    a('s_mul_i32 s25, s24, 20480')
    a('v_add_u32 v6, 4096, v4')
    for t in range(4):
        a(f'buffer_store_dwordx4 v[{20 + 4 * t}:{23 + 4 * t}], v4, s[16:19], s25 offen offset:{1024 * t}')
    a('buffer_store_dwordx4 v[36:39], v6, s[16:19], s25 offen')
    a('s_branch L_prep_done')


def gen_relayout(a):
    make_srd(a, 12, 4, 0, 4096 * 1280)
    make_srd(a, 16, 6, 0, 640 * 3456)
    make_srd(a, 20, 10, 0, 1728 * 1280)
    make_srd(a, 24, 8, WS_WOF, SZ_WOF)
    make_srd(a, 28, 8, WS_W1F, SZ_W1F)
    make_srd(a, 32, 8, WS_W2F, SZ_W2F)
    a('v_lshrrev_b32 v1, 6, v0')
    a.nop(1)
    a('v_readfirstlane_b32 s36, v1')
    a('v_and_b32 v1, 63, v0')
    a('v_lshrrev_b32 v2, 3, v1')
    a('v_and_b32 v3, 7, v1')
    a('v_lshlrev_b32 v3, 4, v3')
    a('s_movk_i32 s37, 1280')
    a('v_mul_lo_u32 v4, v2, s37')
    a('v_add_u32 v4, v4, v3')
    a('s_movk_i32 s37, 3456')
    a('v_mul_lo_u32 v5, v2, s37')
    a('v_add_u32 v5, v5, v3')
    a('v_lshlrev_b32 v6, 4, v1')
    a('v_lshrrev_b32 v7, 4, v1')
    a('v_bfe_u32 v8, v1, 2, 2')
    a('v_lshl_add_u32 v7, v7, 2, v8')
    a('v_lshlrev_b32 v7, 7, v7')
    a('v_and_b32 v8, 3, v1')
    a('v_lshl_add_u32 v7, v8, 3, v7')
    a('s_lshl_b32 s38, s36, 13')
    a('v_add_u32 v7, s38, v7')
    a(f's_sub_u32 s39, s2, {N_GEMV + N_LN}')
    a(f's_mul_i32 s39, s39, {4 * JOBS_PER_WAVE}')
    a(f's_mul_i32 s40, s36, {JOBS_PER_WAVE}')
    a('s_add_u32 s39, s39, s40')

    variants = [(0, 1280, 10, 12, 24, 1280, 128, 4),
                (1280, 1820, 27, 16, 28, 3456, 20, 5),
                (1820, 2360, 10, 20, 32, 1280, 54, 4)]
    for t in range(JOBS_PER_WAVE):
        a(f's_add_u32 s41, s39, {t}')
        for vi, (lo, hi, ncg, srd, dsrd, stride, M, voff) in enumerate(variants):
            a(f's_cmp_lt_u32 s41, {hi}')
            a(f's_cbranch_scc0 L_rl_{t}_{vi}_next')
            a(f's_sub_u32 s42, s41, {lo}')
            magic_div(a, 43, 42, ncg, 47)
            a(f's_mul_i32 s44, s43, {ncg}')
            a('s_sub_u32 s44, s42, s44')
            a(f's_mul_i32 s45, s43, {32 * stride}')
            a('s_lshl_b32 s46, s44, 7')
            a('s_add_u32 s45, s45, s46')
            for t4 in range(4):
                a(f's_add_u32 m0, s38, {t * 4096 + t4 * 1024}')
                a(f's_add_u32 s46, s45, {t4 * 8 * stride}')
                a(f'buffer_load_dwordx4 v{voff}, s[{srd}:{srd + 3}], s46 offen lds')
            a(f's_mul_i32 s44, s44, {4 * M}')
            a('s_add_u32 s44, s44, s43')
            a(f's_lshl_b32 s{50 + t}, s44, 10')
            a(f's_branch L_rl_{t}_issued')
            a.label(f'L_rl_{t}_{vi}_next')
        a(f's_mov_b32 s{50 + t}, 0')
        a.label(f'L_rl_{t}_issued')
    a('s_waitcnt vmcnt(0)')
    a.vmq = []
    for t in range(JOBS_PER_WAVE):
        base = 20 + 16 * t
        for nb in range(4):
            for sel in range(2):
                a(f'ds_read_b64_tr_b16 v[{base + 4 * nb + 2 * sel}:{base + 4 * nb + 2 * sel + 1}], v7 '
                  f'offset:{t * 4096 + 32 * nb + 2048 * sel}')
    a('s_waitcnt lgkmcnt(0)')
    for t in range(JOBS_PER_WAVE):
        base = 20 + 16 * t
        a(f's_add_u32 s41, s39, {t}')
        for vi, (lo, hi, ncg, srd, dsrd, stride, M, voff) in enumerate(variants):
            a(f's_cmp_lt_u32 s41, {hi}')
            a(f's_cbranch_scc0 L_rs_{t}_{vi}_next')
            for nb in range(4):
                a(f's_add_u32 s46, s{50 + t}, {nb * M * 1024}')
                a(f'buffer_store_dwordx4 v[{base + 4 * nb}:{base + 4 * nb + 3}], v6, s[{dsrd}:{dsrd + 3}], s46 offen')
            a(f's_branch L_rs_{t}_done')
            a.label(f'L_rs_{t}_{vi}_next')
        a.label(f'L_rs_{t}_done')
    a('s_branch L_prep_done')


def prep_ts(a):
    a.wait_all()
    a('s_memtime s[64:65]')
    a('s_memrealtime s[66:67]')
    load_ptr(a, 4, KA_WS)
    a('s_waitcnt lgkmcnt(0)')
    make_srd(a, 8, 4, WS_TS + 4 * 65536, 65536)
    a('s_lshl_b32 s3, s2, 5')
    a('s_mov_b64 exec, -1')
    a('v_mov_b32 v1, s3')
    for i in range(2):
        a(f'v_mov_b32 v2, s{60 + 4 * i}')
        a(f'v_mov_b32 v3, s{60 + 4 * i + 2}')
        a(f'buffer_store_dwordx2 v[2:3], v1, s[8:11], 0 offen offset:{8 * i}')
        a.nop(2)


def gen_prep(name='prep_kernel', cfg={}):
    a = Asm()
    if cfg.get('ts'):
        a('s_memtime s[60:61]')
        a('s_memrealtime s[62:63]')
    a(f's_cmp_ge_u32 s2, {PREP_GRID}')
    a('s_cbranch_scc1 L_prep_done')
    load_ptr(a, 8, KA_WS)
    a(f's_cmp_ge_u32 s2, {N_GEMV}')
    a('s_cbranch_scc1 L_prep_not_gemv')
    load_ptr(a, 4, KA_C)
    load_ptr(a, 6, KA_WMOD)
    a('s_waitcnt lgkmcnt(0)')
    gen_gemv(a)
    a.label('L_prep_not_gemv')
    a.vmq, a.lgq = [], []
    a(f's_cmp_ge_u32 s2, {N_GEMV + N_LN}')
    a('s_cbranch_scc1 L_prep_relay')
    load_ptr(a, 4, KA_X)
    a('s_waitcnt lgkmcnt(0)')
    gen_ln(a)
    a.label('L_prep_relay')
    a.vmq, a.lgq = [], []
    load_ptr(a, 4, KA_WO)
    load_ptr(a, 6, KA_W1)
    load_ptr(a, 10, KA_W2)
    a('s_waitcnt lgkmcnt(0)')
    gen_relayout(a)
    a.label('L_prep_done')
    if cfg.get('ts'):
        a(f's_cmp_ge_u32 s2, {PREP_GRID}')
        a('s_cbranch_scc1 L_prep_end')
        prep_ts(a)
        a.label('L_prep_end')
    a('s_endpgm')
    errs = a.check()
    assert not errs, 'hazards in prep'
    return kernel_header(name) + a.text(), kernel_desc(name, 96, 96)
```

```python
from common import *

LOAD_SC = ''
STORE_SC = ''


def m16(d, a_, b_, c):
    return f'v_mfma_f32_16x16x32_bf16 {d}, {a_}, {b_}, {c}'


def ts(a, cfg, idx, base=60):
    if cfg.get('ts'):
        a(f's_memtime s[{base + 4 * idx}:{base + 4 * idx + 1}]')
        a(f's_memrealtime s[{base + 4 * idx + 2}:{base + 4 * idx + 3}]')
        a('s_waitcnt lgkmcnt(0)')


def ts_store(a, cfg, n, slot, swave, base=60):
    if not cfg.get('ts'):
        return
    a.wait_all()
    ts(a, cfg, n - 1)
    load_ptr(a, 4, KA_WS)
    a('s_waitcnt lgkmcnt(0)')
    make_srd(a, 8, 4, WS_TS + slot * 65536, 65536)
    a('s_lshl_b32 s3, s2, 2')
    a(f's_add_u32 s3, s3, s{swave}')
    a('s_lshl_b32 s3, s3, 6')
    a('v_mov_b32 v1, s3')
    for i in range(n):
        a(f'v_mov_b32 v2, s{base + 4 * i}')
        a(f'v_mov_b32 v3, s{base + 4 * i + 2}')
        a(f'buffer_store_dwordx2 v[2:3], v1, s[8:11], 0 offen offset:{8 * i}')
        a.nop(2)


S_A, S_B, S_X, S_M, S_O1, S_O2, S_O3 = 8, 12, 16, 20, 24, 28, 52
S_WAVE, S_RT, S_CT, S_KOFF = 32, 33, 34, 35
V_TID, V_VB, V_VA = 250, 240, 244
V_EP = 80
RING = 4


def ring_reg(slot, f):
    return slot * 36 + f * 4


def gen_splitk(cfg, kind):
    oproj = kind == 'oproj'
    M = 128 if oproj else 54
    nsteps = 32 if oproj else 14
    a = Asm()
    L = f'L_{kind}'
    if cfg.get('ts'):
        a('s_memtime s[60:61]')
        a('s_memrealtime s[62:63]')
    a('s_cmp_ge_u32 s2, 256')
    a(f's_cbranch_scc1 {L}_done')
    load_ptr(a, 4, KA_WS)
    load_ptr(a, 6, KA_X if oproj else KA_OUT)
    a(f'v_mov_b32 v{V_TID}, v0')
    a('v_lshrrev_b32 v1, 6, v0')
    a('s_and_b32 s3, s2, 7')
    a('s_lshr_b32 s36, s2, 3')
    a(f'v_readfirstlane_b32 s{S_WAVE}, v1')
    a(f's_lshr_b32 s{S_RT}, s3, 1')
    a(f's_lshl_b32 s{S_RT}, s{S_RT}, 3')
    a('s_and_b32 s37, s36, 7')
    a(f's_add_u32 s{S_RT}, s{S_RT}, s37')
    a(f's_and_b32 s{S_CT}, s3, 1')
    a(f's_lshl_b32 s{S_CT}, s{S_CT}, 2')
    a('s_lshr_b32 s37, s36, 3')
    a(f's_add_u32 s{S_CT}, s{S_CT}, s37')
    a('s_waitcnt lgkmcnt(0)')
    if oproj:
        make_srd(a, S_A, 4, WS_WOF, SZ_WOF)
        make_srd(a, S_B, 4, WS_O, SZ_O)
        make_srd(a, S_X, 6, 0, 2048 * 1280)
        make_srd(a, S_O1, 4, WS_Y, SZ_Y)
        make_srd(a, S_O2, 4, WS_X2, SZ_X2)
        make_srd(a, S_O3, 4, WS_STATS, SZ_STATS)
    else:
        make_srd(a, S_A, 4, WS_W2F, SZ_W2F)
        make_srd(a, S_B, 4, WS_H, SZ_H)
        make_srd(a, S_X, 4, WS_X2, SZ_X2)
        make_srd(a, S_O1, 6, 0, 2048 * 1280)
    make_srd(a, S_M, 4, WS_MOD, SZ_MOD)
    if oproj:
        a(f's_lshl_b32 s38, s{S_WAVE}, 5')
    else:
        a(f's_mul_i32 s38, s{S_WAVE}, 14')
        a(f's_cmp_eq_u32 s{S_WAVE}, 3')
        a('s_cselect_b32 s39, 1, 0')
        a('s_sub_u32 s38, s38, s39')
    a(f'v_and_b32 v2, 63, v{V_TID}')
    a('v_lshlrev_b32 v3, 4, v2')
    a('s_lshl_b32 s39, s38, 10')
    a('v_add_u32 v4, s39, v3')
    for r in range(4):
        a(f's_lshl_b32 s39, s{S_RT}, 2')
        a(f's_add_u32 s39, s39, {r}')
        a(f's_mul_i32 s39, s39, {M * 1024}')
        a(f'v_add_u32 v{V_VB + r}, s39, v4')
    for c in range(5):
        a(f's_mul_i32 s39, s{S_CT}, 5')
        a(f's_add_u32 s39, s39, {c}')
        a(f's_mul_i32 s39, s39, {M * 1024}')
        a(f'v_add_u32 v{V_VA + c}, s39, v4')

    def loads(step, soff):
        out = []
        slot = step % RING
        imm = (step & 3) * 1024
        for f in range(9):
            srd = S_B if f < 4 else S_A
            v = V_VB + f if f < 4 else V_VA + f - 4
            r = ring_reg(slot, f)
            out.append((f'buffer_load_dwordx4 a[{r}:{r + 3}], v{v}, s[{srd}:{srd + 3}], {soff} offen offset:{imm}',
                        ('k', step)))
        return out

    a(f's_mov_b32 s{S_KOFF}, 0')
    for step in range(RING):
        for t, tag in loads(step, '0'):
            a(t, tag=tag)
    i_, g_ = 5, 6
    a(f'v_and_b32 v{i_}, 15, v2')
    a(f'v_lshrrev_b32 v{g_}, 4, v2')
    a(f's_mul_i32 s39, s{S_CT}, 320')
    a(f'v_lshl_add_u32 v7, v{g_}, 4, s39')
    if oproj:
        a(f's_lshl_b32 s40, s{S_RT}, 2')
        a(f's_add_u32 s40, s40, s{S_WAVE}')
        a('s_lshl_b32 s41, s40, 4')
        a(f'v_add_u32 v8, s41, v{i_}')
        a('s_movk_i32 s41, 1280')
        a('v_mul_lo_u32 v9, v8, s41')
        a('v_lshrrev_b32 v10, 1, v7')
        a('v_add_u32 v9, v9, v10')
        for c in range(5):
            a(f'buffer_load_dwordx2 v[{V_EP + 2 * c}:{V_EP + 2 * c + 1}], v9, s[{S_X}:{S_X + 3}], 0 offen offset:{32 * c}')
        a(f's_movk_i32 s41, {1280 * 4}')
        a(f's_movk_i32 s42, {2560 * 4}')
        for c in range(5):
            a(f'buffer_load_dwordx4 v[{V_EP + 12 + 4 * c}:{V_EP + 15 + 4 * c}], v7, s[{S_M}:{S_M + 3}], s41 offen offset:{64 * c}')
        for c in range(5):
            a(f'buffer_load_dwordx4 v[{V_EP + 32 + 4 * c}:{V_EP + 35 + 4 * c}], v7, s[{S_M}:{S_M + 3}], s42 offen offset:{64 * c}')
    else:
        a(f's_lshl_b32 s40, s{S_RT}, 3')
        a(f's_add_u32 s40, s40, s{S_CT}')
        a('s_lshl_b32 s40, s40, 2')
        a(f's_add_u32 s40, s40, s{S_WAVE}')
        a('s_mul_i32 s40, s40, 5120')
        a('s_add_u32 s41, s40, 4096')
        for c in range(5):
            so, imm = ('s40', 1024 * c) if c < 4 else ('s41', 0)
            a(f'buffer_load_dwordx4 v[{V_EP + 4 * c}:{V_EP + 3 + 4 * c}], v3, s[{S_X}:{S_X + 3}], {so} offen offset:{imm}')
        a(f's_movk_i32 s41, {3200 * 4}')
        for c in range(5):
            a(f'buffer_load_dwordx4 v[{V_EP + 20 + 4 * c}:{V_EP + 23 + 4 * c}], v7, s[{S_M}:{S_M + 3}], s41 offen offset:{64 * c}')
    if oproj:
        gen_uv_job(a, cfg)
    for r in range(80):
        a(f'v_mov_b32 v{r + 0}, 0') if r >= 12 else None
    a('v_mov_b32 v236, v3')
    a('v_mov_b32 v237, v8' if oproj else 'v_mov_b32 v237, v5')
    a('v_mov_b32 v238, v6')
    a('v_mov_b32 v239, v5')
    for r in range(12):
        a(f'v_mov_b32 v{r}, 0')
    ts(a, cfg, 1)

    def step_mfma(step):
        slot = step % RING
        out = []
        for c in range(5):
            for r in range(4):
                d = vr((r * 5 + c) * 4, 4)
                out.append(m16(d, ar(ring_reg(slot, 4 + c), 4), ar(ring_reg(slot, r), 4), d))
        return out

    for step in range(nsteps):
        if oproj and step % 4 == 0:
            a.mark(f'sk{step // 4}')
        a.wait_tag_vm(lambda t: t == ('k', step))
        nxt = step + RING
        skip = (not oproj) and step == 13
        if skip:
            a(f's_cmp_ge_u32 s{S_WAVE}, 2')
            a(f's_cbranch_scc1 {L}_skip13')
        ms = step_mfma(step)
        ld = []
        if nxt < nsteps:
            if oproj:
                if step % 4 == 0:
                    a(f's_add_u32 s{S_KOFF}, s{S_KOFF}, 4096')
                ld = loads(nxt, f's{S_KOFF}')
            else:
                so = (nxt >> 2) * 4096
                if nxt == 13:
                    a(f's_mov_b32 s39, {so}')
                    a(f's_cmp_ge_u32 s{S_WAVE}, 2')
                    a(f's_cselect_b32 s{S_KOFF}, {so - 1024}, s39')
                else:
                    a(f's_mov_b32 s{S_KOFF}, {so}')
                ld = loads(nxt, f's{S_KOFF}')
        for k, m in enumerate(ms):
            a(m)
            if ld and k % 4 == 3:
                c = k // 4
                t, tag = ld[4 + c]
                if c < 4:
                    a(t, tag=tag)
        if ld:
            for f in (8, 0, 1, 2, 3):
                a(ld[f][0], tag=ld[f][1])
        if skip:
            a.label(f'{L}_skip13')
    if oproj:
        a.mark('skend')
    ts(a, cfg, 2)
    a.nop(8)
    a(f's_mul_i32 s39, s{S_WAVE}, 20480')
    a('v_add_u32 v230, s39, v236')
    for r in range(4):
        for c in range(5):
            b = (r * 5 + c) * 4
            a(f'ds_write_b128 v230, v[{b}:{b + 3}] offset:{(r * 5 + c) * 1024}')
    a(f's_mul_i32 s39, s{S_WAVE}, 5120')
    a('v_add_u32 v230, s39, v236')
    a('v_add_u32 v231, 40960, v230')
    a('s_waitcnt lgkmcnt(0)')
    a('s_barrier')
    for w2 in range(4):
        for c in range(5):
            b = (w2 * 5 + c) * 4
            a(f'ds_read_b128 v[{b}:{b + 3}], v{230 + (w2 >> 1)} offset:{(w2 & 1) * 20480 + c * 1024}')
    for c in range(5):
        for e in range(4):
            b = c * 4 + e
            a(f'v_add_f32 v{b}, v{b}, v{b + 20}')
            a(f'v_add_f32 v{b + 40}, v{b + 40}, v{b + 60}')
            a(f'v_add_f32 v{b}, v{b}, v{b + 40}')
    if oproj:
        for c in range(5):
            x0 = V_EP + 2 * c
            for e in range(4):
                src = x0 + (e >> 1)
                if e & 1:
                    a(f'v_and_b32 v20, 0xffff0000, v{src}')
                else:
                    a(f'v_lshlrev_b32 v20, 16, v{src}')
                a(f'v_fma_f32 v{c * 4 + e}, v{V_EP + 12 + 4 * c + e}, v{c * 4 + e}, v20')
        a(f's_lshl_b32 s40, s{S_RT}, 3')
        a(f's_add_u32 s40, s40, s{S_CT}')
        a('s_lshl_b32 s40, s40, 2')
        a(f's_add_u32 s40, s40, s{S_WAVE}')
        a('s_mul_i32 s40, s40, 5120')
        a('s_add_u32 s41, s40, 4096')
        for c in range(5):
            so, imm = ('s40', 1024 * c) if c < 4 else ('s41', 0)
            a(f'buffer_store_dwordx4 v[{4 * c}:{4 * c + 3}], v236, s[{S_O2}:{S_O2 + 3}], {so} offen offset:{imm}')
        a(f's_lshl_b32 s40, s{S_RT}, 2')
        a(f's_add_u32 s40, s40, s{S_WAVE}')
        a('s_mul_i32 s40, s40, 20480')
        for c in range(5):
            cb = V_EP + 32 + 4 * c
            for e in range(4):
                a(f'v_add_f32 v{cb + e}, 1.0, v{cb + e}')
            a(f'v_cvt_pk_bf16_f32 v20, v{cb}, v{cb + 1}')
            a(f'v_cvt_pk_bf16_f32 v21, v{cb + 2}, v{cb + 3}')
            a(f'v_lshlrev_b32 v{cb}, 16, v20')
            a(f'v_and_b32 v{cb + 1}, 0xffff0000, v20')
            a(f'v_lshlrev_b32 v{cb + 2}, 16, v21')
            a(f'v_and_b32 v{cb + 3}, 0xffff0000, v21')
            for e in range(4):
                a(f'v_mul_f32 v{cb + e}, v{cb + e}, v{4 * c + e}')
            y = 24 + 2 * c
            a(f'v_cvt_pk_bf16_f32 v{y}, v{cb}, v{cb + 1}')
            a(f'v_cvt_pk_bf16_f32 v{y + 1}, v{cb + 2}, v{cb + 3}')
            a(f's_mul_i32 s41, s{S_CT}, 5')
            a(f's_add_u32 s41, s41, {c}')
            a('s_and_b32 s42, s41, 1')
            a('s_lshl_b32 s42, s42, 3')
            a('s_lshr_b32 s41, s41, 1')
            a('s_lshl_b32 s41, s41, 10')
            a('s_add_u32 s41, s41, s42')
            a('s_add_u32 s41, s41, s40')
            a(f'buffer_store_dwordx2 v[{y}:{y + 1}], v236, s[{S_O1}:{S_O1 + 3}], s41 offen')
        a('v_add_f32 v20, v0, v1')
        for e in range(2, 20):
            a(f'v_add_f32 v20, v20, v{e}')
        sum_over_g(a, 20, 21)
        a(f'v_mul_f32 v20, {fhex(1.0 / 80)}, v20')
        a('v_sub_f32 v22, v0, v20')
        a('v_mul_f32 v21, v22, v22')
        for e in range(1, 20):
            a(f'v_sub_f32 v22, v{e}, v20')
            a('v_fmac_f32 v21, v22, v22')
        sum_over_g(a, 21, 22)
        a('v_lshlrev_b32 v22, 6, v237')
        a(f's_lshl_b32 s41, s{S_CT}, 3')
        a('s_mov_b64 exec, 0xffff')
        a(f'buffer_store_dwordx2 v[20:21], v22, s[{S_O3}:{S_O3 + 3}], s41 offen')
        a('s_mov_b64 exec, -1')
    else:
        k = 1.0 / LOG2E
        a(f's_lshl_b32 s40, s{S_RT}, 2')
        a(f's_add_u32 s40, s40, s{S_WAVE}')
        a('s_lshl_b32 s40, s40, 4')
        a('v_add_u32 v22, s40, v239')
        a('s_movk_i32 s41, 1280')
        a('v_mul_lo_u32 v22, v22, s41')
        a(f's_mul_i32 s41, s{S_CT}, 160')
        a('v_lshl_add_u32 v23, v238, 3, s41')
        a('v_add_u32 v22, v22, v23')
        for c in range(5):
            for e in range(4):
                g = V_EP + 20 + 4 * c + e
                a(f'v_mul_f32 v{g}, {fhex(k)}, v{g}')
                a(f'v_fma_f32 v{4 * c + e}, v{g}, v{4 * c + e}, v{V_EP + 4 * c + e}')
            y = 24 + 2 * c
            a(f'v_cvt_pk_bf16_f32 v{y}, v{4 * c}, v{4 * c + 1}')
            a(f'v_cvt_pk_bf16_f32 v{y + 1}, v{4 * c + 2}, v{4 * c + 3}')
            a(f'buffer_store_dwordx2 v[{y}:{y + 1}], v22, s[{S_O1}:{S_O1 + 3}], 0 offen offset:{32 * c}')
    ts_store(a, cfg, 4, 1 if oproj else 3, S_WAVE)
    a.label(f'{L}_done')
    a('s_endpgm')
    errs = a.check()
    assert not errs
    lines = a.text().split('\n')
    if oproj:
        lines, info = fold_loops(lines, 'sk', 's43', f'{L}_loop')
        print(kind, 'fold', info)
    return '\n'.join(lines)


def gen_uv_job(a, cfg, fused=False):
    S_W1, S_UV = 44, 48
    saved = (list(a.vmq), list(a.lgq))
    a('s_cmp_ge_u32 s2, 108')
    a('s_cbranch_scc1 L_uv_skip')
    make_srd(a, S_W1, F_WS if fused else 4, WS_W1F, SZ_W1F)
    make_srd(a, S_UV, F_WS if fused else 4, WS_UV, SZ_UV)
    a('s_mul_i32 s39, s2, 20')
    a(f's_mul_i32 s40, s{S_WAVE}, 5')
    a('s_add_u32 s39, s39, s40')
    a('s_lshl_b32 s39, s39, 10')
    a('s_add_u32 s41, s39, 4096')
    for t in range(5):
        so, imm = ('s39', 1024 * t) if t < 4 else ('s41', 0)
        a(f'buffer_load_dwordx4 v[{140 + 4 * t}:{143 + 4 * t}], v3, s[{S_W1}:{S_W1 + 3}], {so} offen offset:{imm}{LOAD_SC}')
    a('v_cmp_eq_u32 vcc, 0, v5')
    a(f'v_mov_b32 v10, {1920 * 4}')
    a(f'v_mov_b32 v11, {2560 * 4}')
    a('v_cndmask_b32 v10, v10, v11, vcc')
    a('v_lshl_add_u32 v10, v6, 4, v10')
    a(f's_mul_i32 s39, s{S_WAVE}, {5 * 128}')
    a('v_add_u32 v10, s39, v10')
    a('v_cndmask_b32 v11, 0, 1.0, vcc')
    for t in range(5):
        for hh in range(2):
            r = 160 + 8 * t + 4 * hh
            a(f'buffer_load_dwordx4 v[{r}:{r + 3}], v10, s[{S_M}:{S_M + 3}], 0 offen offset:{128 * t + 64 * hh}{LOAD_SC}')
    for t in range(5):
        r = 160 + 8 * t
        for e in range(8):
            a(f'v_add_f32 v{r + e}, v{r + e}, v11')
        for d in range(4):
            a(f'v_cvt_pk_bf16_f32 v{200 + 4 * t + d}, v{r + 2 * d}, v{r + 2 * d + 1}')
    a.nop(2)
    for t in range(5):
        a(m16('v[220:223]', vr(140 + 4 * t, 4), vr(200 + 4 * t, 4), '0' if t == 0 else 'v[220:223]'))
    a.nop(8)
    a('v_lshlrev_b32 v10, 6, v5')
    a('v_lshl_add_u32 v10, v6, 4, v10')
    a(f's_lshl_b32 s39, s{S_WAVE}, 7')
    a('s_add_u32 s39, s39, 81920')
    a('v_add_u32 v10, s39, v10')
    a('v_cmp_gt_u32 vcc, 2, v5')
    a('s_and_saveexec_b64 s[40:41], vcc')
    a('ds_write_b128 v10, v[220:223]')
    a('s_mov_b64 exec, s[40:41]')
    a('s_waitcnt lgkmcnt(0)')
    a('s_barrier')
    a(f'v_lshlrev_b32 v10, 2, v{F_TID if fused else V_TID}')
    a('v_add_u32 v11, 81920, v10')
    for w in range(4):
        a(f'ds_read_b32 v{220 + w}, v11 offset:{128 * w}')
    a('v_add_f32 v220, v220, v221')
    a('v_add_f32 v222, v222, v223')
    a('v_add_f32 v220, v220, v222')
    a(f'v_mul_f32 v220, {fhex(LOG2E)}, v220')
    a(f'v_lshrrev_b32 v11, 4, v{F_TID if fused else V_TID}')
    a(f'v_mul_u32_u24 v11, {1728 * 4}, v11')
    a(f'v_and_b32 v10, 15, v{F_TID if fused else V_TID}')
    a('v_lshl_add_u32 v11, v10, 2, v11')
    a('s_lshl_b32 s39, s2, 6')
    a(f'v_cmp_gt_u32 vcc, 32, v{F_TID if fused else V_TID}')
    a('s_and_saveexec_b64 s[40:41], vcc')
    a(f'buffer_store_dword v220, v11, s[{S_UV}:{S_UV + 3}], s39 offen{STORE_SC}')
    a('s_mov_b64 exec, s[40:41]')
    a.wait_all()
    a.label('L_uv_skip')
    a.vmq, a.lgq = saved


def gen_ffn1(cfg):
    a = Asm()
    L = 'L_ffn1'
    S_W, S_Y, S_ST, S_UV, S_H = 8, 12, 16, 20, 24
    S_WV, S_RT4, S_CT4, S_M0 = 32, 33, 34, 35
    S_NB = 44
    if cfg.get('ts'):
        a('s_memtime s[60:61]')
        a('s_memrealtime s[62:63]')
    a('s_cmp_ge_u32 s2, 256')
    a(f's_cbranch_scc1 {L}_done')
    load_ptr(a, 4, KA_WS)
    a('v_mov_b32 v250, v0')
    a('v_lshrrev_b32 v1, 6, v0')
    a('s_and_b32 s3, s2, 7')
    a('s_lshr_b32 s36, s2, 3')
    a(f'v_readfirstlane_b32 s{S_WV}, v1')
    a(f's_lshr_b32 s{S_RT4}, s3, 1')
    a(f's_lshl_b32 s{S_RT4}, s{S_RT4}, 2')
    a('s_and_b32 s37, s36, 3')
    a(f's_add_u32 s{S_RT4}, s{S_RT4}, s37')
    a(f's_and_b32 s{S_CT4}, s3, 1')
    a(f's_lshl_b32 s{S_CT4}, s{S_CT4}, 3')
    a('s_lshr_b32 s37, s36, 2')
    a(f's_add_u32 s{S_CT4}, s{S_CT4}, s37')
    a('s_waitcnt lgkmcnt(0)')
    make_srd(a, S_W, 4, WS_W1F, SZ_W1F)
    make_srd(a, S_Y, 4, WS_Y, SZ_Y)
    make_srd(a, S_ST, 4, WS_STATS, SZ_STATS)
    make_srd(a, S_UV, 4, WS_UV, SZ_UV)
    make_srd(a, S_H, 4, WS_H, SZ_H)
    for c in range(7):
        a(f's_mul_i32 s37, s{S_CT4}, 7')
        a(f's_add_u32 s37, s37, {c}')
        a('s_min_u32 s37, s37, 107')
        a(f's_mul_i32 s{S_NB + c}, s37, 20480')
    a('v_and_b32 v2, 63, v250')
    a('v_lshlrev_b32 v3, 4, v2')
    a(f's_lshl_b32 s37, s{S_WV}, 10')
    a('v_add_u32 v243, s37, v3')
    a(f's_mul_i32 s{S_M0}, s{S_WV}, 7168')
    for r in range(2):
        a(f's_lshl_b32 s37, s{S_RT4}, 3')
        a(f's_lshl_b32 s38, s{S_WV}, 1')
        a('s_add_u32 s37, s37, s38')
        a(f's_add_u32 s37, s37, {r}')
        a('s_mul_i32 s37, s37, 20480')
        a(f'v_add_u32 v{240 + r}, s37, v3')
    for t in range(5):
        a(f's_mov_b32 s{52 + t}, {t * 4096}')

    def group(t):
        for c in range(7):
            a(f's_add_u32 m0, s{S_M0}, {t * 28672 + c * 1024}')
            a(f's_add_u32 s37, s{S_NB + c}, {t * 4096}')
            a(f'buffer_load_dwordx4 v243, s[{S_W}:{S_W + 3}], s37 offen lds', tag=('A', t))
        for mm in range(4):
            m = 4 * t + mm
            for r in range(2):
                b = (m * 2 + r) * 4
                a(f'buffer_load_dwordx4 a[{b}:{b + 3}], v{240 + r}, s[{S_Y}:{S_Y + 3}], s{52 + t} offen offset:{mm * 1024}',
                  tag=('B', m))

    group(0)
    a('v_and_b32 v5, 15, v2')
    a('v_lshrrev_b32 v6, 4, v2')
    for r in range(2):
        a(f's_lshl_b32 s37, s{S_RT4}, 3')
        a(f's_lshl_b32 s38, s{S_WV}, 1')
        a('s_add_u32 s37, s37, s38')
        a(f's_add_u32 s37, s37, {r}')
        a('s_lshl_b32 s37, s37, 4')
        a('v_add_u32 v7, s37, v5')
        a('v_lshlrev_b32 v7, 6, v7')
        for k in range(4):
            b = 100 + 16 * r + 4 * k
            a(f'buffer_load_dwordx4 v[{b}:{b + 3}], v7, s[{S_ST}:{S_ST + 3}], 0 offen offset:{16 * k}')
    a('v_lshlrev_b32 v7, 4, v6')
    a(f's_movk_i32 s38, {1728 * 4}')
    for c in range(7):
        a(f's_mul_i32 s37, s{S_CT4}, 7')
        a(f's_add_u32 s37, s37, {c}')
        a('s_min_u32 s37, s37, 107')
        a('s_lshl_b32 s37, s37, 6')
        a(f'buffer_load_dwordx4 v[{140 + 4 * c}:{143 + 4 * c}], v7, s[{S_UV}:{S_UV + 3}], s37 offen')
        a('s_add_u32 s37, s37, s38')
        a(f'buffer_load_dwordx4 v[{170 + 4 * c}:{173 + 4 * c}], v7, s[{S_UV}:{S_UV + 3}], s37 offen')
    group(1)
    for r in range(2):
        b = 100 + 16 * r
        a(f'v_add_f32 v8, v{b}, v{b + 2}')
        for k in range(2, 8):
            a(f'v_add_f32 v8, v8, v{b + 2 * k}')
        a(f'v_mul_f32 v8, 0.125, v8') if False else a(f'v_mul_f32 v8, {fhex(0.125)}, v8')
        a(f'v_add_f32 v9, v{b + 1}, v{b + 3}')
        for k in range(2, 8):
            a(f'v_add_f32 v9, v9, v{b + 2 * k + 1}')
        for k in range(8):
            a(f'v_sub_f32 v10, v{b + 2 * k}, v8')
            a(f'v_mul_f32 v10, v10, v10')
            a(f'v_fmac_f32 v9, {fhex(80.0)}, v10')
        a(f'v_mov_b32 v10, {fhex(1e-5)}')
        a(f'v_fmac_f32 v10, {fhex(1.0 / 640)}, v9')
        a('v_rsq_f32 v10, v10')
        a.nop(1)
        a(f'v_mul_f32 v{244 + 2 * r}, {fhex(LOG2E)}, v10')
        a(f'v_mul_f32 v{245 + 2 * r}, v8, v10')
    group(2)
    a('v_mov_b32 v242, v3')
    for r in range(56):
        a(f'v_mov_b32 v{r}, 0')
    a('v_mov_b32 v230, v242')
    a('v_add_u32 v231, 57344, v242')
    a('v_add_u32 v232, 114688, v242')
    ts(a, cfg, 1)

    def a_read(m, c):
        f = m * 7 + c
        base = f // 56
        r = 160 + (m & 1) * 28 + c * 4
        return f'ds_read_b128 a[{r}:{r + 3}], v{230 + base} offset:{(f - base * 56) * 1024}'

    for m in range(20):
        t = m // 4
        if m % 4 == 0:
            a.wait_tag_vm(lambda tg: tg == ('A', t))
            a('s_barrier')
            if t == 0:
                group(3)
            if t == 1:
                group(4)
            for c in range(7):
                a(a_read(m, c))
        a.wait_tag_vm(lambda tg: tg == ('B', m))
        nxt = [a_read(m + 1, c) for c in range(7)] if (m + 1) % 4 != 0 else []
        k = 0
        for c in range(7):
            for r in range(2):
                d = vr((r * 7 + c) * 4, 4)
                bb = (m * 2 + r) * 4
                a(m16(d, ar(160 + (m & 1) * 28 + c * 4, 4), ar(bb, 4), d))
                if nxt and r == 1:
                    a(nxt[c])
    ts(a, cfg, 2)
    a.nop(8)
    for r in range(2):
        a(f's_lshl_b32 s37, s{S_RT4}, 3')
        a(f's_lshl_b32 s38, s{S_WV}, 1')
        a('s_add_u32 s37, s37, s38')
        a(f's_add_u32 s37, s37, {r}')
        a(f's_mul_i32 s{40 + r}, s37, {54 * 1024}')
    for c in range(7):
        a(f's_mul_i32 s38, s{S_CT4}, 7')
        a(f's_add_u32 s38, s38, {c}')
        a('s_cmp_ge_u32 s38, 108')
        a(f's_cbranch_scc1 {L}_skip_{c}')
        a('s_and_b32 s39, s38, 1')
        a('s_lshl_b32 s39, s39, 3')
        a('s_lshr_b32 s38, s38, 1')
        a('s_lshl_b32 s38, s38, 10')
        a('s_add_u32 s38, s38, s39')
        for r in range(2):
            b = (r * 7 + c) * 4
            T = 60 + 8 * r
            for e in range(4):
                a(f'v_fma_f32 v{T + e}, -v{245 + 2 * r}, v{140 + 4 * c + e}, v{170 + 4 * c + e}')
            for e in range(4):
                a(f'v_fma_f32 v{b + e}, v{244 + 2 * r}, v{b + e}, v{T + e}')
            for e in range(4):
                a(f'v_exp_f32 v{T + e}, -v{b + e}')
            for e in range(4):
                a(f'v_add_f32 v{T + e}, 1.0, v{T + e}')
            for e in range(4):
                a(f'v_rcp_f32 v{T + e}, v{T + e}')
            for e in range(4):
                a(f'v_mul_f32 v{b + e}, v{b + e}, v{T + e}')
            a(f'v_cvt_pk_bf16_f32 v{T + 4}, v{b}, v{b + 1}')
            a(f'v_cvt_pk_bf16_f32 v{T + 5}, v{b + 2}, v{b + 3}')
            a(f's_add_u32 s39, s38, s{40 + r}')
            a(f'buffer_store_dwordx2 v[{T + 4}:{T + 5}], v242, s[{S_H}:{S_H + 3}], s39 offen')
        a.label(f'{L}_skip_{c}')
    ts_store(a, cfg, 4, 2, S_WV)
    a.label(f'{L}_done')
    a('s_endpgm')
    errs = a.check()
    assert not errs
    return a.text()


def gen(stage, cfg):
    name = stage + '_kernel'
    if cfg.get('final') == stage:
        name = cfg['final_name']
    if stage in ('oproj', 'ffn2'):
        body = gen_splitk(cfg, stage)
        lds = 81920 + 1024
        desc = kernel_desc(name, 512, 256)
    else:
        body = gen_ffn1(cfg)
        lds = 140 * 1024
        desc = kernel_desc(name, 512, 256)
    launch = f'; @launch kernel={name} grid=(256,1,1) block=(256,1,1) lds={lds}'
    return kernel_header(name) + body, desc, launch


F_TID = 249
F_WS = 90
F_X2 = 200


def splitk_phase(a, cfg, kind, wait_cb, stamp):
    oproj = kind == 'oproj'
    M = 128 if oproj else 54
    nsteps = 32 if oproj else 14
    L = f'L_{kind}'
    RING = cfg.get('ring_o' if oproj else 'ring_f', 4)
    if not oproj:
        load_ptr(a, 6, KA_OUT)
    else:
        load_ptr(a, 6, KA_X)
    a('s_and_b32 s3, s2, 7')
    a('s_lshr_b32 s36, s2, 3')
    a(f's_lshr_b32 s{S_RT}, s3, 1')
    a(f's_lshl_b32 s{S_RT}, s{S_RT}, 3')
    a('s_and_b32 s37, s36, 7')
    a(f's_add_u32 s{S_RT}, s{S_RT}, s37')
    a(f's_and_b32 s{S_CT}, s3, 1')
    a(f's_lshl_b32 s{S_CT}, s{S_CT}, 2')
    a('s_lshr_b32 s37, s36, 3')
    a(f's_add_u32 s{S_CT}, s{S_CT}, s37')
    a('s_waitcnt lgkmcnt(0)')
    if oproj:
        make_srd(a, S_A, F_WS, WS_WOF, SZ_WOF)
        make_srd(a, S_B, F_WS, WS_O, SZ_O)
        make_srd(a, S_X, 6, 0, 2048 * 1280)
        make_srd(a, S_O1, F_WS, WS_Y, SZ_Y)
        make_srd(a, S_O3, F_WS, WS_STATS, SZ_STATS)
    else:
        make_srd(a, S_A, F_WS, WS_W2F, SZ_W2F)
        make_srd(a, S_B, F_WS, WS_H, SZ_H)
        make_srd(a, S_O1, 6, 0, 2048 * 1280)
    make_srd(a, S_M, F_WS, WS_MOD, SZ_MOD)
    if oproj:
        a(f's_lshl_b32 s38, s{S_WAVE}, 5')
    else:
        a(f's_mul_i32 s38, s{S_WAVE}, 14')
        a(f's_cmp_eq_u32 s{S_WAVE}, 3')
        a('s_cselect_b32 s39, 1, 0')
        a('s_sub_u32 s38, s38, s39')
    a(f'v_and_b32 v2, 63, v{F_TID}')
    a('v_lshlrev_b32 v3, 4, v2')
    a('s_lshl_b32 s39, s38, 10')
    a('v_add_u32 v4, s39, v3')
    for r in range(4):
        a(f's_lshl_b32 s39, s{S_RT}, 2')
        a(f's_add_u32 s39, s39, {r}')
        a(f's_mul_i32 s39, s39, {M * 1024}')
        a(f'v_add_u32 v{V_VB + r}, s39, v4')
    for c in range(5):
        a(f's_mul_i32 s39, s{S_CT}, 5')
        a(f's_add_u32 s39, s39, {c}')
        a(f's_mul_i32 s39, s39, {M * 1024}')
        a(f'v_add_u32 v{V_VA + c}, s39, v4')

    def load(step, f, soff, imm=0):
        slot = step % RING
        srd = S_B if f < 4 else S_A
        v = V_VB + f if f < 4 else V_VA + f - 4
        r = ring_reg(slot, f)
        return (f'buffer_load_dwordx4 a[{r}:{r + 3}], v{v}, s[{srd}:{srd + 3}], {soff} offen offset:{imm}{LOAD_SC}',
                ('k', step))

    a(f's_mov_b32 s{S_KOFF}, 0')
    early_a = (not oproj) or cfg.get('early_wof', 0)
    if early_a:
        for step in range(RING):
            a(f's_movk_i32 s{S_KOFF}, {step * 1024}')
            for f in range(4, 9):
                t, tag = load(step, f, f's{S_KOFF}')
                a(t, tag=tag)
    i_, g_ = 5, 6
    a(f'v_and_b32 v{i_}, 15, v2')
    a(f'v_lshrrev_b32 v{g_}, 4, v2')
    a(f's_mul_i32 s39, s{S_CT}, 320')
    a(f'v_lshl_add_u32 v7, v{g_}, 4, s39')
    a(f's_lshl_b32 s40, s{S_RT}, 2')
    a(f's_add_u32 s40, s40, s{S_WAVE}')
    a('s_lshl_b32 s41, s40, 4')
    a(f'v_add_u32 v8, s41, v{i_}')
    if oproj:
        a('s_movk_i32 s41, 1280')
        a('v_mul_lo_u32 v9, v8, s41')
        a('v_lshrrev_b32 v10, 1, v7')
        a('v_add_u32 v9, v9, v10')
        for c in range(5):
            a(f'buffer_load_dwordx2 v[{V_EP + 2 * c}:{V_EP + 2 * c + 1}], v9, s[{S_X}:{S_X + 3}], 0 offen offset:{32 * c}')
        a(f's_movk_i32 s41, {1280 * 4}')
        a(f's_movk_i32 s42, {2560 * 4}')
        for c in range(5):
            a(f'buffer_load_dwordx4 v[{V_EP + 12 + 4 * c}:{V_EP + 15 + 4 * c}], v7, s[{S_M}:{S_M + 3}], s41 offen offset:{64 * c}{LOAD_SC}')
        for c in range(5):
            a(f'buffer_load_dwordx4 v[{V_EP + 32 + 4 * c}:{V_EP + 35 + 4 * c}], v7, s[{S_M}:{S_M + 3}], s42 offen offset:{64 * c}{LOAD_SC}')
    else:
        a(f's_movk_i32 s41, {3200 * 4}')
        for c in range(5):
            a(f'buffer_load_dwordx4 v[{V_EP + 20 + 4 * c}:{V_EP + 23 + 4 * c}], v7, s[{S_M}:{S_M + 3}], s41 offen offset:{64 * c}{LOAD_SC}')
    a('v_mov_b32 v236, v3')
    a('v_mov_b32 v237, v8')
    a('v_mov_b32 v238, v6')
    a('v_mov_b32 v239, v5')
    for r in range(12, 80):
        a(f'v_mov_b32 v{r}, 0')
    wait_cb()
    stamp('bar1' if oproj else 'bar3')
    for step in range(RING):
        a(f's_movk_i32 s{S_KOFF}, {step * 1024}')
        for f in (range(4) if early_a else range(9)):
            t, tag = load(step, f, f's{S_KOFF}')
            a(t, tag=tag)
    if oproj and not cfg.get('no_uv'):
        gen_uv_job(a, cfg, fused=True)
    for r in range(12):
        a(f'v_mov_b32 v{r}, 0')

    def step_mfma(step):
        slot = step % RING
        out = []
        for c in range(5):
            for r in range(4):
                d = vr((r * 5 + c) * 4, 4)
                out.append(m16(d, ar(ring_reg(slot, 4 + c), 4), ar(ring_reg(slot, r), 4), d))
        return out

    for step in range(nsteps):
        if oproj and step % RING == 0:
            a.mark(f'sk{step // RING}')
        a.wait_tag_vm(lambda t: t == ('k', step))
        nxt = step + RING
        skip = (not oproj) and step == 13
        if skip:
            a(f's_cmp_ge_u32 s{S_WAVE}, 2')
            a(f's_cbranch_scc1 {L}_skip13')
        ms = step_mfma(step)
        ld = []
        if nxt < nsteps:
            if (not oproj) and nxt == 13:
                a(f's_cmp_ge_u32 s{S_WAVE}, 2')
                a('s_cselect_b32 s39, 0, 1024')
                a(f's_add_u32 s{S_KOFF}, s{S_KOFF}, s39')
            else:
                a(f's_add_u32 s{S_KOFF}, s{S_KOFF}, 1024')
            ld = [load(nxt, f, f's{S_KOFF}') for f in range(9)]
        for k, m in enumerate(ms):
            a(m)
            if ld and k % 4 == 3 and k // 4 < 4:
                t, tag = ld[4 + k // 4]
                a(t, tag=tag)
        if ld:
            for f in (8, 0, 1, 2, 3):
                a(ld[f][0], tag=ld[f][1])
        if skip:
            a.label(f'{L}_skip13')
    if oproj:
        a.mark('skend')
    stamp('oploop' if oproj else 'f2loop')
    a.nop(8)
    a(f's_mul_i32 s39, s{S_WAVE}, 20480')
    a('v_add_u32 v230, s39, v236')
    for r in range(4):
        for c in range(5):
            b = (r * 5 + c) * 4
            a(f'ds_write_b128 v230, v[{b}:{b + 3}] offset:{(r * 5 + c) * 1024}')
    a(f's_mul_i32 s39, s{S_WAVE}, 5120')
    a('v_add_u32 v230, s39, v236')
    a('v_add_u32 v231, 40960, v230')
    a('s_waitcnt lgkmcnt(0)')
    a('s_barrier')
    for w2 in range(4):
        for c in range(5):
            b = (w2 * 5 + c) * 4
            a(f'ds_read_b128 v[{b}:{b + 3}], v{230 + (w2 >> 1)} offset:{(w2 & 1) * 20480 + c * 1024}')
    for c in range(5):
        for e in range(4):
            b = c * 4 + e
            a(f'v_add_f32 v{b}, v{b}, v{b + 20}')
            a(f'v_add_f32 v{b + 40}, v{b + 40}, v{b + 60}')
            a(f'v_add_f32 v{b}, v{b}, v{b + 40}')
    if oproj:
        for c in range(5):
            x0 = V_EP + 2 * c
            for e in range(4):
                src = x0 + (e >> 1)
                if e & 1:
                    a(f'v_and_b32 v20, 0xffff0000, v{src}')
                else:
                    a(f'v_lshlrev_b32 v20, 16, v{src}')
                a(f'v_fma_f32 v{F_X2 + c * 4 + e}, v{V_EP + 12 + 4 * c + e}, v{c * 4 + e}, v20')
        a(f's_lshl_b32 s40, s{S_RT}, 2')
        a(f's_add_u32 s40, s40, s{S_WAVE}')
        a('s_mul_i32 s40, s40, 20480')
        for c in range(5):
            cb = V_EP + 32 + 4 * c
            for e in range(4):
                a(f'v_add_f32 v{cb + e}, 1.0, v{cb + e}')
            a(f'v_cvt_pk_bf16_f32 v20, v{cb}, v{cb + 1}')
            a(f'v_cvt_pk_bf16_f32 v21, v{cb + 2}, v{cb + 3}')
            a(f'v_lshlrev_b32 v{cb}, 16, v20')
            a(f'v_and_b32 v{cb + 1}, 0xffff0000, v20')
            a(f'v_lshlrev_b32 v{cb + 2}, 16, v21')
            a(f'v_and_b32 v{cb + 3}, 0xffff0000, v21')
            for e in range(4):
                a(f'v_mul_f32 v{cb + e}, v{cb + e}, v{F_X2 + 4 * c + e}')
            y = 24 + 2 * c
            a(f'v_cvt_pk_bf16_f32 v{y}, v{cb}, v{cb + 1}')
            a(f'v_cvt_pk_bf16_f32 v{y + 1}, v{cb + 2}, v{cb + 3}')
            a(f's_mul_i32 s41, s{S_CT}, 5')
            a(f's_add_u32 s41, s41, {c}')
            a('s_and_b32 s42, s41, 1')
            a('s_lshl_b32 s42, s42, 3')
            a('s_lshr_b32 s41, s41, 1')
            a('s_lshl_b32 s41, s41, 10')
            a('s_add_u32 s41, s41, s42')
            a('s_add_u32 s41, s41, s40')
            a(f'buffer_store_dwordx2 v[{y}:{y + 1}], v236, s[{S_O1}:{S_O1 + 3}], s41 offen{STORE_SC}')
        X = F_X2
        a(f'v_add_f32 v20, v{X}, v{X + 1}')
        for e in range(2, 20):
            a(f'v_add_f32 v20, v20, v{X + e}')
        sum_over_g(a, 20, 21)
        a(f'v_mul_f32 v20, {fhex(1.0 / 80)}, v20')
        a(f'v_sub_f32 v22, v{X}, v20')
        a('v_mul_f32 v21, v22, v22')
        for e in range(1, 20):
            a(f'v_sub_f32 v22, v{X + e}, v20')
            a('v_fmac_f32 v21, v22, v22')
        sum_over_g(a, 21, 22)
        a('v_lshlrev_b32 v22, 6, v237')
        a(f's_lshl_b32 s41, s{S_CT}, 3')
        a('s_mov_b64 exec, 0xffff')
        a(f'buffer_store_dwordx2 v[20:21], v22, s[{S_O3}:{S_O3 + 3}], s41 offen{STORE_SC}')
        a('s_mov_b64 exec, -1')
    else:
        k = 1.0 / LOG2E
        a('s_movk_i32 s41, 1280')
        a('v_mul_lo_u32 v22, v237, s41')
        a(f's_mul_i32 s41, s{S_CT}, 160')
        a('v_lshl_add_u32 v23, v238, 3, s41')
        a('v_add_u32 v22, v22, v23')
        for c in range(5):
            for e in range(4):
                g = V_EP + 20 + 4 * c + e
                a(f'v_mul_f32 v{g}, {fhex(k)}, v{g}')
                a(f'v_fma_f32 v{4 * c + e}, v{g}, v{4 * c + e}, v{F_X2 + 4 * c + e}')
            y = 24 + 2 * c
            a(f'v_cvt_pk_bf16_f32 v{y}, v{4 * c}, v{4 * c + 1}')
            a(f'v_cvt_pk_bf16_f32 v{y + 1}, v{4 * c + 2}, v{4 * c + 3}')
            a(f'buffer_store_dwordx2 v[{y}:{y + 1}], v22, s[{S_O1}:{S_O1 + 3}], 0 offen offset:{32 * c}')


def ffn1_phase(a, cfg, wait_cb, stamp):
    L = 'L_ffn1'
    S_W, S_Y, S_ST, S_UV, S_H = 8, 12, 16, 20, 24
    S_WV, S_RT4, S_CT4, S_M0 = 32, 33, 34, 35
    S_NB = 44
    a('s_and_b32 s3, s2, 7')
    a('s_lshr_b32 s36, s2, 3')
    a(f's_lshr_b32 s{S_RT4}, s3, 1')
    a(f's_lshl_b32 s{S_RT4}, s{S_RT4}, 2')
    a('s_and_b32 s37, s36, 3')
    a(f's_add_u32 s{S_RT4}, s{S_RT4}, s37')
    a(f's_and_b32 s{S_CT4}, s3, 1')
    a(f's_lshl_b32 s{S_CT4}, s{S_CT4}, 3')
    a('s_lshr_b32 s37, s36, 2')
    a(f's_add_u32 s{S_CT4}, s{S_CT4}, s37')
    make_srd(a, S_W, F_WS, WS_W1F, SZ_W1F)
    make_srd(a, S_Y, F_WS, WS_Y, SZ_Y)
    make_srd(a, S_ST, F_WS, WS_STATS, SZ_STATS)
    make_srd(a, S_UV, F_WS, WS_UV, SZ_UV)
    make_srd(a, S_H, F_WS, WS_H, SZ_H)
    for c in range(7):
        a(f's_mul_i32 s37, s{S_CT4}, 7')
        a(f's_add_u32 s37, s37, {c}')
        a('s_min_u32 s37, s37, 107')
        a(f's_mul_i32 s{S_NB + c}, s37, 20480')
    a(f'v_and_b32 v2, 63, v{F_TID}')
    a('v_lshlrev_b32 v3, 4, v2')
    a(f's_lshl_b32 s37, s{S_WV}, 10')
    a('v_add_u32 v243, s37, v3')
    a(f's_mul_i32 s{S_M0}, s{S_WV}, 7168')
    for r in range(2):
        a(f's_lshl_b32 s37, s{S_RT4}, 3')
        a(f's_lshl_b32 s38, s{S_WV}, 1')
        a('s_add_u32 s37, s37, s38')
        a(f's_add_u32 s37, s37, {r}')
        a('s_mul_i32 s37, s37, 20480')
        a(f'v_add_u32 v{240 + r}, s37, v3')
    for t in range(5):
        a(f's_mov_b32 s{52 + t}, {t * 4096}')
    for t in range(5):
        for c in range(7):
            a(f's_add_u32 m0, s{S_M0}, {t * 28672 + c * 1024}')
            a(f's_add_u32 s37, s{S_NB + c}, {t * 4096}')
            a(f'buffer_load_dwordx4 v243, s[{S_W}:{S_W + 3}], s37 offen{LOAD_SC} lds', tag=('A', t))
    a('v_and_b32 v5, 15, v2')
    a('v_lshrrev_b32 v6, 4, v2')
    a('v_mov_b32 v242, v3')
    for r in range(12, 56):
        a(f'v_mov_b32 v{r}, 0')
    a('v_mov_b32 v230, v242')
    a('v_add_u32 v231, 57344, v242')
    a('v_add_u32 v232, 114688, v242')
    wait_cb()
    stamp('bar2')
    for r in range(2):
        a(f's_lshl_b32 s37, s{S_RT4}, 3')
        a(f's_lshl_b32 s38, s{S_WV}, 1')
        a('s_add_u32 s37, s37, s38')
        a(f's_add_u32 s37, s37, {r}')
        a('s_lshl_b32 s37, s37, 4')
        a('v_add_u32 v7, s37, v5')
        a('v_lshlrev_b32 v7, 6, v7')
        for k in range(4):
            b = 100 + 16 * r + 4 * k
            a(f'buffer_load_dwordx4 v[{b}:{b + 3}], v7, s[{S_ST}:{S_ST + 3}], 0 offen offset:{16 * k}{LOAD_SC}')
    for m in range(20):
        for r in range(2):
            b = (m * 2 + r) * 4
            a(f'buffer_load_dwordx4 a[{b}:{b + 3}], v{240 + r}, s[{S_Y}:{S_Y + 3}], s{52 + m // 4} offen offset:{(m & 3) * 1024}{LOAD_SC}',
              tag=('B', m))
    a('v_lshlrev_b32 v7, 4, v6')
    a(f's_movk_i32 s38, {1728 * 4}')
    for c in range(7):
        a(f's_mul_i32 s37, s{S_CT4}, 7')
        a(f's_add_u32 s37, s37, {c}')
        a('s_min_u32 s37, s37, 107')
        a('s_lshl_b32 s37, s37, 6')
        a(f'buffer_load_dwordx4 v[{140 + 4 * c}:{143 + 4 * c}], v7, s[{S_UV}:{S_UV + 3}], s37 offen{LOAD_SC}')
        a('s_add_u32 s37, s37, s38')
        a(f'buffer_load_dwordx4 v[{170 + 4 * c}:{173 + 4 * c}], v7, s[{S_UV}:{S_UV + 3}], s37 offen{LOAD_SC}')
    for r in range(12):
        a(f'v_mov_b32 v{r}, 0')

    def a_read(m, c):
        f = m * 7 + c
        base = f // 56
        r = 160 + (m & 1) * 28 + c * 4
        return f'ds_read_b128 a[{r}:{r + 3}], v{230 + base} offset:{(f - base * 56) * 1024}'

    for c in range(7):
        a(a_read(0, c))
    for m in range(20):
        a.wait_tag_vm(lambda tg: tg == ('B', m))
        nxt = [a_read(m + 1, c) for c in range(7)] if m + 1 < 20 else []
        a.wait_regs([f'a[{160 + (m & 1) * 28}:{160 + (m & 1) * 28 + 27}]'])
        for c in range(7):
            for r in range(2):
                d = vr((r * 7 + c) * 4, 4)
                bb = (m * 2 + r) * 4
                a(m16(d, ar(160 + (m & 1) * 28 + c * 4, 4), ar(bb, 4), d))
                if nxt and r == 0:
                    a(nxt[c])
    stamp('f1loop')
    for r in range(2):
        b = 100 + 16 * r
        a(f'v_add_f32 v78, v{b}, v{b + 2}')
        for k in range(2, 8):
            a(f'v_add_f32 v78, v78, v{b + 2 * k}')
        a(f'v_mul_f32 v78, {fhex(0.125)}, v78')
        a(f'v_add_f32 v79, v{b + 1}, v{b + 3}')
        for k in range(2, 8):
            a(f'v_add_f32 v79, v79, v{b + 2 * k + 1}')
        for k in range(8):
            a(f'v_sub_f32 v80, v{b + 2 * k}, v78')
            a(f'v_mul_f32 v80, v80, v80')
            a(f'v_fmac_f32 v79, {fhex(80.0)}, v80')
        a(f'v_mov_b32 v80, {fhex(1e-5)}')
        a(f'v_fmac_f32 v80, {fhex(1.0 / 640)}, v79')
        a('v_rsq_f32 v80, v80')
        a.nop(1)
        a(f'v_mul_f32 v{244 + 2 * r}, {fhex(LOG2E)}, v80')
        a(f'v_mul_f32 v{245 + 2 * r}, v78, v80')
    for r in range(2):
        a(f's_lshl_b32 s37, s{S_RT4}, 3')
        a(f's_lshl_b32 s38, s{S_WV}, 1')
        a('s_add_u32 s37, s37, s38')
        a(f's_add_u32 s37, s37, {r}')
        a(f's_mul_i32 s{40 + r}, s37, {54 * 1024}')
    for c in range(7):
        a(f's_mul_i32 s38, s{S_CT4}, 7')
        a(f's_add_u32 s38, s38, {c}')
        a('s_cmp_ge_u32 s38, 108')
        a(f's_cbranch_scc1 {L}_skip_{c}')
        a('s_and_b32 s39, s38, 1')
        a('s_lshl_b32 s39, s39, 3')
        a('s_lshr_b32 s38, s38, 1')
        a('s_lshl_b32 s38, s38, 10')
        a('s_add_u32 s38, s38, s39')
        saved = (list(a.vmq), list(a.lgq))
        for r in range(2):
            b = (r * 7 + c) * 4
            T = 60 + 8 * r
            for e in range(4):
                a(f'v_fma_f32 v{T + e}, -v{245 + 2 * r}, v{140 + 4 * c + e}, v{170 + 4 * c + e}')
            for e in range(4):
                a(f'v_fma_f32 v{b + e}, v{244 + 2 * r}, v{b + e}, v{T + e}')
            for e in range(4):
                a(f'v_exp_f32 v{T + e}, -v{b + e}')
            for e in range(4):
                a(f'v_add_f32 v{T + e}, 1.0, v{T + e}')
            for e in range(4):
                a(f'v_rcp_f32 v{T + e}, v{T + e}')
            for e in range(4):
                a(f'v_mul_f32 v{b + e}, v{b + e}, v{T + e}')
            a(f'v_cvt_pk_bf16_f32 v{T + 4}, v{b}, v{b + 1}')
            a(f'v_cvt_pk_bf16_f32 v{T + 5}, v{b + 2}, v{b + 3}')
            a(f's_add_u32 s39, s38, s{40 + r}')
            a(f'buffer_store_dwordx2 v[{T + 4}:{T + 5}], v242, s[{S_H}:{S_H + 3}], s39 offen{STORE_SC}')
        a.label(f'{L}_skip_{c}')
```

```python
from common import *

LOAD_SC = ''
STORE_SC = ''
F_TID = 249
F_WS = 90
F_WAVE = 32
F_X2 = 200

S_A, S_B, S_X, S_M, S_O1, S_O3 = 8, 12, 16, 20, 24, 52
S_RT, S_CT, S_KOFF = 33, 34, 35
V_VB, V_VA, V_VB8 = 240, 244, 232
V_EP = 80


def m16(d, a_, b_, c):
    return f'v_mfma_f32_16x16x32_bf16 {d}, {a_}, {b_}, {c}'


def ring_reg(slot, f):
    return slot * 36 + f * 4


def tile_64x80(a):
    a('s_and_b32 s3, s2, 7')
    a('s_lshr_b32 s36, s2, 3')
    a(f's_lshr_b32 s{S_RT}, s3, 1')
    a(f's_lshl_b32 s{S_RT}, s{S_RT}, 3')
    a('s_and_b32 s37, s36, 7')
    a(f's_add_u32 s{S_RT}, s{S_RT}, s37')
    a(f's_and_b32 s{S_CT}, s3, 1')
    a(f's_lshl_b32 s{S_CT}, s{S_CT}, 2')
    a('s_lshr_b32 s37, s36, 3')
    a(f's_add_u32 s{S_CT}, s{S_CT}, s37')


S_W1, S_UV = 44, 48
UV_LDS = 81920


def uv_pre(a):
    make_srd(a, S_W1, F_WS, WS_W1F, SZ_W1F)
    make_srd(a, S_UV, F_WS, WS_UV, SZ_UV)
    a('s_cmp_ge_u32 s2, 108')
    a(f's_cselect_b32 s{S_W1 + 2}, 0, s{S_W1 + 2}')
    a(f's_cselect_b32 s{S_UV + 2}, 0, s{S_UV + 2}')
    a('v_cmp_eq_u32 vcc, 0, v5')
    a(f'v_mov_b32 v10, {1920 * 4}')
    a(f'v_mov_b32 v11, {2560 * 4}')
    a('v_cndmask_b32 v10, v10, v11, vcc')
    a('v_lshl_add_u32 v10, v6, 4, v10')
    a(f's_mul_i32 s39, s{F_WAVE}, {5 * 128}')
    a('v_add_u32 v10, s39, v10')
    a('v_cndmask_b32 v11, 0, 1.0, vcc')
    for t in range(5):
        for hh in range(2):
            r = 140 + 8 * t + 4 * hh
            a(f'buffer_load_dwordx4 v[{r}:{r + 3}], v10, s[{S_M}:{S_M + 3}], 0 offen offset:{128 * t + 64 * hh}{LOAD_SC}')
    for t in range(5):
        r = 140 + 8 * t
        for e in range(8):
            a(f'v_add_f32 v{r + e}, v{r + e}, v11')
        for d in range(4):
            a(f'v_cvt_pk_bf16_f32 v{200 + 4 * t + d}, v{r + 2 * d}, v{r + 2 * d + 1}')


def uv_loads(a):
    a('s_min_u32 s39, s2, 107')
    a('s_mul_i32 s39, s39, 20')
    a(f's_mul_i32 s40, s{F_WAVE}, 5')
    a('s_add_u32 s39, s39, s40')
    a('s_lshl_b32 s39, s39, 10')
    a('s_add_u32 s41, s39, 4096')
    for t in range(5):
        so, imm = ('s39', 1024 * t) if t < 4 else ('s41', 0)
        a(f'buffer_load_dwordx4 v[{140 + 4 * t}:{143 + 4 * t}], v236, s[{S_W1}:{S_W1 + 3}], {so} offen offset:{imm}{LOAD_SC}')


def uv_finish(a):
    for t in range(5):
        a(m16('v[220:223]', vr(140 + 4 * t, 4), vr(200 + 4 * t, 4), '0' if t == 0 else 'v[220:223]'))
    a('v_lshlrev_b32 v224, 6, v239')
    a('v_lshl_add_u32 v224, v238, 4, v224')
    a(f's_lshl_b32 s39, s{F_WAVE}, 7')
    a(f's_add_u32 s39, s39, {UV_LDS}')
    a('v_add_u32 v224, s39, v224')
    a('v_cmp_gt_u32 vcc, 2, v239')
    a.nop(3)
    a('s_and_saveexec_b64 s[40:41], vcc')
    a('ds_write_b128 v224, v[220:223]')
    a('s_mov_b64 exec, s[40:41]')
    a('s_waitcnt lgkmcnt(0)')
    a('s_barrier')
    a(f'v_and_b32 v224, 31, v{F_TID}')
    a('v_lshlrev_b32 v224, 2, v224')
    a(f'v_add_u32 v225, {UV_LDS}, v224')
    for w in range(4):
        a(f'ds_read_b32 v{220 + w}, v225 offset:{128 * w}')
    a(f'v_lshrrev_b32 v225, 4, v{F_TID}')
    a(f'v_mul_u32_u24 v225, {1728 * 4}, v225')
    a(f'v_and_b32 v224, 15, v{F_TID}')
    a('v_lshl_add_u32 v225, v224, 2, v225')
    a('s_min_u32 s39, s2, 107')
    a('s_lshl_b32 s39, s39, 6')
    a('v_add_f32 v220, v220, v221')
    a('v_add_f32 v222, v222, v223')
    a('v_add_f32 v220, v220, v222')
    a(f'v_mul_f32 v220, {fhex(LOG2E)}, v220')
    a(f'v_cmp_gt_u32 vcc, 32, v{F_TID}')
    a('s_and_saveexec_b64 s[40:41], vcc')
    a(f'buffer_store_dword v220, v225, s[{S_UV}:{S_UV + 3}], s39 offen{STORE_SC}')
    a('s_mov_b64 exec, s[40:41]')


def splitk_phase(a, cfg, kind, wait_cb, stamp):
    oproj = kind == 'oproj'
    M = 128 if oproj else 54
    nsteps = 32 if oproj else 14
    L = f'L_{kind}'
    RING = cfg.get('ring_o' if oproj else 'ring_f', 6 if oproj else 6)
    load_ptr(a, 6, KA_X if oproj else KA_OUT)
    tile_64x80(a)
    a('s_waitcnt lgkmcnt(0)')
    if oproj:
        make_srd(a, S_A, F_WS, WS_WOF, SZ_WOF)
        make_srd(a, S_B, F_WS, WS_O, SZ_O)
        make_srd(a, S_X, 6, 0, 2048 * 1280)
        make_srd(a, S_O1, F_WS, WS_Y, SZ_Y)
        make_srd(a, S_O3, F_WS, WS_STATS, SZ_STATS)
    else:
        make_srd(a, S_A, F_WS, WS_W2F, SZ_W2F)
        make_srd(a, S_B, F_WS, WS_H, SZ_H)
        make_srd(a, S_O1, 6, 0, 2048 * 1280)
    make_srd(a, S_M, F_WS, WS_MOD, SZ_MOD)
    a(f's_mul_i32 s38, s{F_WAVE}, {nsteps}')
    a(f'v_and_b32 v2, 63, v{F_TID}')
    a('v_lshlrev_b32 v3, 4, v2')
    a('s_lshl_b32 s39, s38, 10')
    a('v_add_u32 v4, s39, v3')
    if not oproj:
        a('v_lshlrev_b32 v12, 3, v2')
        a('v_add_u32 v12, s39, v12')
    for r in range(4):
        a(f's_lshl_b32 s39, s{S_RT}, 2')
        a(f's_add_u32 s39, s39, {r}')
        a(f's_mul_i32 s39, s39, {M * 1024}')
        a(f'v_add_u32 v{V_VB + r}, s39, v4')
        if not oproj:
            a(f'v_add_u32 v{V_VB8 + r}, s39, v12')
    for c in range(5):
        a(f's_mul_i32 s39, s{S_CT}, 5')
        a(f's_add_u32 s39, s39, {c}')
        a(f's_mul_i32 s39, s39, {M * 1024}')
        a(f'v_add_u32 v{V_VA + c}, s39, v4')

    def load(step, f, soff):
        slot = step % RING
        r = ring_reg(slot, f)
        if f >= 4:
            return [(f'buffer_load_dwordx4 a[{r}:{r + 3}], v{V_VA + f - 4}, s[{S_A}:{S_A + 3}], {soff} offen{LOAD_SC}',
                     ('k', step))]
        if (not oproj) and step % 7 == 3:
            return [(f'buffer_load_dwordx2 a[{r + 2 * h}:{r + 2 * h + 1}], v{V_VB8 + f}, s[{S_B}:{S_B + 3}], {soff} offen '
                     f'offset:{512 * h}{LOAD_SC}', ('k', step)) for h in range(2)]
        return [(f'buffer_load_dwordx4 a[{r}:{r + 3}], v{V_VB + f}, s[{S_B}:{S_B + 3}], {soff} offen{LOAD_SC}',
                 ('k', step))]

    early_a = (not oproj) or cfg.get('early_wof', 0)
    if early_a:
        for step in range(RING):
            a(f's_movk_i32 s{S_KOFF}, {step * 1024}')
            for f in range(4, 9):
                for t, tag in load(step, f, f's{S_KOFF}'):
                    a(t, tag=tag)
    i_, g_ = 5, 6
    a(f'v_and_b32 v{i_}, 15, v2')
    a(f'v_lshrrev_b32 v{g_}, 4, v2')
    a(f's_mul_i32 s39, s{S_CT}, 320')
    a(f'v_lshl_add_u32 v7, v{g_}, 4, s39')
    a(f's_lshl_b32 s40, s{S_RT}, 2')
    a(f's_add_u32 s40, s40, s{F_WAVE}')
    a('s_lshl_b32 s41, s40, 4')
    a(f'v_add_u32 v8, s41, v{i_}')
    if oproj:
        a('s_movk_i32 s41, 1280')
        a('v_mul_lo_u32 v9, v8, s41')
        a('v_lshrrev_b32 v10, 1, v7')
        a('v_add_u32 v9, v9, v10')
        for c in range(5):
            a(f'buffer_load_dwordx2 v[{V_EP + 2 * c}:{V_EP + 2 * c + 1}], v9, s[{S_X}:{S_X + 3}], 0 offen offset:{32 * c}')
        a(f's_movk_i32 s41, {1280 * 4}')
        a(f's_movk_i32 s42, {2560 * 4}')
        for c in range(5):
            a(f'buffer_load_dwordx4 v[{V_EP + 12 + 4 * c}:{V_EP + 15 + 4 * c}], v7, s[{S_M}:{S_M + 3}], s41 offen offset:{64 * c}{LOAD_SC}')
        for c in range(5):
            a(f'buffer_load_dwordx4 v[{V_EP + 32 + 4 * c}:{V_EP + 35 + 4 * c}], v7, s[{S_M}:{S_M + 3}], s42 offen offset:{64 * c}{LOAD_SC}')
    else:
        a(f's_movk_i32 s41, {3200 * 4}')
        for c in range(5):
            a(f'buffer_load_dwordx4 v[{V_EP + 20 + 4 * c}:{V_EP + 23 + 4 * c}], v7, s[{S_M}:{S_M + 3}], s41 offen offset:{64 * c}{LOAD_SC}')
    a('v_mov_b32 v236, v3')
    a('v_mov_b32 v237, v8')
    a('v_mov_b32 v238, v6')
    a('v_mov_b32 v239, v5')
    for r in range(80):
        a(f'v_mov_b32 v{r}, 0')
    wait_cb()
    stamp('bar1' if oproj else 'bar3')
    for step in range(RING):
        a(f's_movk_i32 s{S_KOFF}, {step * 1024}')
        for f in (range(4) if early_a else range(9)):
            for t, tag in load(step, f, f's{S_KOFF}'):
                a(t, tag=tag)

    def step_mfma(step):
        slot = step % RING
        out = []
        for c in range(5):
            for r in range(4):
                d = vr((r * 5 + c) * 4, 4)
                out.append(m16(d, ar(ring_reg(slot, 4 + c), 4), ar(ring_reg(slot, r), 4), d))
        return out

    for step in range(nsteps):
        if oproj and step % RING == 0:
            a.mark(f'sk{step // RING}')
        nxt = step + RING
        if (not oproj) and step == 12:
            saved = (list(a.vmq), list(a.lgq))
            a(f's_cmp_eq_u32 s{F_WAVE}, 3')
            a(f's_cbranch_scc1 {L}_skip')
        a.wait_tag_vm(lambda t: t == ('k', step))
        ms = step_mfma(step)
        ld = []
        if nxt < nsteps:
            if (not oproj) and nxt >= 12:
                a(f's_cmp_eq_u32 s{F_WAVE}, 3')
                a('s_cselect_b32 s39, 0, 1024')
                a(f's_add_u32 s{S_KOFF}, s{S_KOFF}, s39')
            else:
                a(f's_add_u32 s{S_KOFF}, s{S_KOFF}, 1024')
            ld = [load(nxt, f, f's{S_KOFF}') for f in range(9)]
        for k, m in enumerate(ms):
            a(m)
            if ld and k % 4 == 3 and k // 4 < 4:
                for t, tag in ld[4 + k // 4]:
                    a(t, tag=tag)
        if ld:
            for f in (8, 0, 1, 2, 3):
                for t, tag in ld[f]:
                    a(t, tag=tag)
        if oproj and nxt == nsteps - 1:
            ffn1_pre(a)
            ffn1_a_dma(a, (3, 4))
    if not oproj:
        a.label(f'{L}_skip')
        a.wait_all()
    else:
        a.mark('skend')
    stamp('oploop' if oproj else 'f2loop')
    a.nop(8)
    a(f's_mul_i32 s39, s{F_WAVE}, 20480')
    a('v_add_u32 v230, s39, v236')
    for r in range(4):
        for c in range(5):
            b = (r * 5 + c) * 4
            a(f'ds_write_b128 v230, v[{b}:{b + 3}] offset:{(r * 5 + c) * 1024}')
    a(f's_mul_i32 s39, s{F_WAVE}, 5120')
    a('v_add_u32 v230, s39, v236')
    a('v_add_u32 v231, 40960, v230')
    a('s_waitcnt lgkmcnt(0)')
    a('s_barrier')
    for c in range(5):
        for w2 in range(4):
            b = (w2 * 5 + c) * 4
            a(f'ds_read_b128 v[{b}:{b + 3}], v{230 + (w2 >> 1)} offset:{(w2 & 1) * 20480 + c * 1024}')
    for c in range(5):
        for e in range(4):
            b = c * 4 + e
            a(f'v_add_f32 v{b}, v{b}, v{b + 20}')
            a(f'v_add_f32 v{b + 40}, v{b + 40}, v{b + 60}')
            a(f'v_add_f32 v{b}, v{b}, v{b + 40}')
    stamp('opred' if oproj else 'f2red')
    if oproj:
        X = F_X2
        for c in range(5):
            x0 = V_EP + 2 * c
            for e in range(4):
                src = x0 + (e >> 1)
                if e & 1:
                    a(f'v_and_b32 v20, 0xffff0000, v{src}')
                else:
                    a(f'v_lshlrev_b32 v20, 16, v{src}')
                a(f'v_fma_f32 v{X + c * 4 + e}, v{V_EP + 12 + 4 * c + e}, v{c * 4 + e}, v20')
        for c in range(5):
            cb = V_EP + 32 + 4 * c
            for e in range(4):
                a(f'v_add_f32 v{cb + e}, 1.0, v{cb + e}')
            a(f'v_cvt_pk_bf16_f32 v20, v{cb}, v{cb + 1}')
            a(f'v_cvt_pk_bf16_f32 v21, v{cb + 2}, v{cb + 3}')
            a(f'v_lshlrev_b32 v{cb}, 16, v20')
            a(f'v_and_b32 v{cb + 1}, 0xffff0000, v20')
            a(f'v_lshlrev_b32 v{cb + 2}, 16, v21')
            a(f'v_and_b32 v{cb + 3}, 0xffff0000, v21')
            for e in range(4):
                a(f'v_mul_f32 v{cb + e}, v{cb + e}, v{X + 4 * c + e}')
            y = 24 + 2 * c
            a(f'v_cvt_pk_bf16_f32 v{y}, v{cb}, v{cb + 1}')
            a(f'v_cvt_pk_bf16_f32 v{y + 1}, v{cb + 2}, v{cb + 3}')
        a(f's_lshl_b32 s40, s{S_RT}, 2')
        a(f's_add_u32 s40, s40, s{F_WAVE}')
        a('s_mul_i32 s40, s40, 20')
        a(f's_lshr_b32 s41, s{S_CT}, 1')
        a('s_mul_i32 s41, s41, 5')
        a('s_add_u32 s40, s40, s41')
        a('s_lshl_b32 s40, s40, 10')
        a('v_lshrrev_b32 v34, 1, v236')
        srd = f's[{S_O1}:{S_O1 + 3}]'
        a(f's_bitcmp1_b32 s{S_CT}, 0')
        a(f's_cbranch_scc1 {L}_yodd')
        a(f'buffer_store_dwordx4 v[24:27], v236, {srd}, s40 offen{STORE_SC}')
        a(f'buffer_store_dwordx4 v[28:31], v236, {srd}, s40 offen offset:1024{STORE_SC}')
        a(f'buffer_store_dwordx2 v[32:33], v34, {srd}, s40 offen offset:2048{STORE_SC}')
        a(f's_branch {L}_ydone')
        a.label(f'{L}_yodd')
        a(f'buffer_store_dwordx2 v[24:25], v34, {srd}, s40 offen offset:2560{STORE_SC}')
        a('s_add_u32 s41, s40, 3072')
        a(f'buffer_store_dwordx4 v[26:29], v236, {srd}, s41 offen{STORE_SC}')
        a(f'buffer_store_dwordx4 v[30:33], v236, {srd}, s41 offen offset:1024{STORE_SC}')
        a.label(f'{L}_ydone')
        a(f'v_add_f32 v20, v{X}, v{X + 1}')
        a(f'v_add_f32 v21, v{X + 2}, v{X + 3}')
        for e in range(4, 20, 2):
            a(f'v_add_f32 v20, v20, v{X + e}')
            a(f'v_add_f32 v21, v21, v{X + e + 1}')
        a('v_add_f32 v20, v20, v21')
        sum_over_g(a, 20, 21)
        a(f'v_mul_f32 v20, {fhex(1.0 / 80)}, v20')
        a(f'v_sub_f32 v22, v{X}, v20')
        a(f'v_sub_f32 v23, v{X + 1}, v20')
        a('v_mul_f32 v21, v22, v22')
        a('v_mul_f32 v35, v23, v23')
        for e in range(2, 20, 2):
            a(f'v_sub_f32 v22, v{X + e}, v20')
            a(f'v_sub_f32 v23, v{X + e + 1}, v20')
            a('v_fmac_f32 v21, v22, v22')
            a('v_fmac_f32 v35, v23, v23')
        a('v_add_f32 v21, v21, v35')
        sum_over_g(a, 21, 22)
        a(f's_lshl_b32 s41, s{S_RT}, 3')
        a(f's_add_u32 s41, s41, s{S_CT}')
        a('s_lshl_b32 s41, s41, 9')
        a(f's_lshl_b32 s42, s{F_WAVE}, 7')
        a('s_add_u32 s41, s41, s42')
        a('v_lshlrev_b32 v22, 3, v239')
        a('s_mov_b64 exec, 0xffff')
        a(f'buffer_store_dwordx2 v[20:21], v22, s[{S_O3}:{S_O3 + 3}], s41 offen{STORE_SC}')
        a('s_mov_b64 exec, -1')
    else:
        k = 1.0 / LOG2E
        a('s_movk_i32 s41, 1280')
        a('v_mul_lo_u32 v22, v237, s41')
        a(f's_mul_i32 s41, s{S_CT}, 160')
        a('v_lshl_add_u32 v23, v238, 3, s41')
        a('v_add_u32 v22, v22, v23')
        for c in range(5):
            for e in range(4):
                g = V_EP + 20 + 4 * c + e
                a(f'v_mul_f32 v{g}, {fhex(k)}, v{g}')
                a(f'v_fma_f32 v{4 * c + e}, v{g}, v{4 * c + e}, v{F_X2 + 4 * c + e}')
            y = 24 + 2 * c
            a(f'v_cvt_pk_bf16_f32 v{y}, v{4 * c}, v{4 * c + 1}')
            a(f'v_cvt_pk_bf16_f32 v{y + 1}, v{4 * c + 2}, v{4 * c + 3}')
            a(f'buffer_store_dwordx2 v[{y}:{y + 1}], v22, s[{S_O1}:{S_O1 + 3}], 0 offen offset:{32 * c}')


F1_W, F1_SRC, F1_M0, F1_RT4, F1_CT4 = 48, 44, 45, 46, 47


def ffn1_pre(a):
    load_ptr(a, 6, KA_W1)
    a('s_and_b32 s3, s2, 7')
    a('s_lshr_b32 s60, s2, 3')
    a(f's_lshr_b32 s{F1_RT4}, s3, 1')
    a(f's_lshl_b32 s{F1_RT4}, s{F1_RT4}, 2')
    a('s_and_b32 s61, s60, 3')
    a(f's_add_u32 s{F1_RT4}, s{F1_RT4}, s61')
    a(f's_and_b32 s{F1_CT4}, s3, 1')
    a(f's_lshl_b32 s{F1_CT4}, s{F1_CT4}, 3')
    a('s_lshr_b32 s61, s60, 2')
    a(f's_add_u32 s{F1_CT4}, s{F1_CT4}, s61')
    a(f'v_and_b32 v227, 63, v{F_TID}')
    a(f's_cmp_eq_u32 s{F1_CT4}, 15')
    a('s_cselect_b32 s61, 5, 13')
    for j in range(7):
        a(f'v_add_u32 v228, {64 * j}, v227')
        a('v_mul_u32_u24 v229, 4682, v228')
        a('v_lshrrev_b32 v229, 16, v229')
        a(f'v_mul_u32_u24 v{220 + j}, 14, v229')
        a(f'v_sub_u32 v{220 + j}, v228, v{220 + j}')
        a(f'v_min_u32 v{220 + j}, s61, v{220 + j}')
        a('v_mul_u32_u24 v229, 3456, v229')
        a(f'v_lshl_add_u32 v{220 + j}, v{220 + j}, 4, v229')
    a('s_waitcnt lgkmcnt(0)')
    make_srd(a, F1_W, 6, 0, 640 * 3456)
    a(f's_mul_i32 s{F1_SRC}, s{F_WAVE}, {32 * 3456}')
    a(f's_mul_i32 s61, s{F1_CT4}, 224')
    a(f's_add_u32 s{F1_SRC}, s{F1_SRC}, s61')
    a(f's_mul_i32 s{F1_M0}, s{F_WAVE}, 7168')


def ffn1_a_dma(a, ts_):
    for t in ts_:
        for j in range(7):
            a(f's_add_u32 m0, s{F1_M0}, {t * 28672 + j * 1024}')
            if j == 0:
                a(f's_add_u32 s61, s{F1_SRC}, {t * 4 * 32 * 3456}')
            else:
                a.nop(1)
            a(f'buffer_load_dwordx4 v{220 + j}, s[{F1_W}:{F1_W + 3}], s61 offen lds', tag=('A', t))


def ffn1_phase(a, cfg, wait_cb, stamp):
    L = 'L_ffn1'
    S_Y, S_ST, S_MD, S_H = 12, 16, 20, 24
    S_RT4, S_CT4, S_M0 = F1_RT4, F1_CT4, F1_M0
    WV = F_WAVE
    UVX = 143360
    UVF = UVX + 3584
    a(f'v_and_b32 v2, 63, v{F_TID}')
    make_srd(a, S_Y, F_WS, WS_Y, SZ_Y)
    make_srd(a, S_ST, F_WS, WS_STATS, SZ_STATS)
    make_srd(a, S_MD, F_WS, WS_MOD, SZ_MOD)
    make_srd(a, S_H, F_WS, WS_H, SZ_H)
    a('v_lshlrev_b32 v3, 4, v2')
    a('v_lshlrev_b32 v4, 3, v2')
    for r in range(2):
        a(f's_lshl_b32 s37, s{S_RT4}, 3')
        a(f's_lshl_b32 s38, s{WV}, 1')
        a('s_add_u32 s37, s37, s38')
        a(f's_add_u32 s37, s37, {r}')
        a('s_mul_i32 s37, s37, 20480')
        a(f'v_add_u32 v{240 + r}, s37, v3')
        a(f'v_add_u32 v{234 + r}, s37, v4')
    for t in range(5):
        a(f's_mov_b32 s{52 + t}, {t * 4096}')
    a('v_and_b32 v236, 15, v2')
    a('v_lshrrev_b32 v237, 4, v2')
    a('v_mov_b32 v242, v3')
    a('v_mov_b32 v233, v4')
    for r in range(2):
        a(f's_lshl_b32 s37, s{WV}, 1')
        a(f's_add_u32 s37, s37, {r}')
        a('s_and_b32 s37, s37, 3')
        a('s_lshl_b32 s37, s37, 7')
        a('v_lshlrev_b32 v5, 10, v237')
        a('v_lshl_add_u32 v5, v236, 3, v5')
        a(f'v_add_u32 v{238 + r}, s37, v5')
    a(f's_lshl_b32 s57, s{S_RT4}, 1')
    a(f's_lshr_b32 s37, s{WV}, 1')
    a('s_add_u32 s57, s57, s37')
    a('s_lshl_b32 s57, s57, 12')
    a('v_lshrrev_b32 v5, 2, v236')
    a('v_lshl_add_u32 v5, v237, 2, v5')
    a('v_mul_u32_u24 v5, 224, v5')
    a('v_and_b32 v6, 3, v236')
    a('v_lshl_add_u32 v230, v6, 3, v5')
    a(f'v_add_u32 v231, {9 * 7168}, v230')
    a(f'v_add_u32 v232, {18 * 7168}, v230')
    a(f'v_add_u32 v228, s{S_M0}, v230')
    a(f'v_add_u32 v229, {3 * 28672}, v228')
    a('v_cmp_eq_u32 vcc, 0, v236')
    a(f'v_mov_b32 v10, {1920 * 4}')
    a(f'v_mov_b32 v11, {2560 * 4}')
    a('v_cndmask_b32 v10, v10, v11, vcc')
    a('v_lshl_add_u32 v10, v237, 4, v10')
    a(f's_lshl_b32 s37, s{WV}, 7')
    a('v_add_u32 v10, s37, v10')
    a('v_cndmask_b32 v11, 0, 1.0, vcc')
    for t in range(5):
        for hh in range(2):
            r = 60 + 8 * t + 4 * hh
            a(f'buffer_load_dwordx4 v[{r}:{r + 3}], v10, s[{S_MD}:{S_MD + 3}], 0 offen offset:{512 * t + 64 * hh}{LOAD_SC}')
    for t in range(5):
        r = 60 + 8 * t
        for e in range(8):
            a(f'v_add_f32 v{r + e}, v{r + e}, v11')
        for d in range(4):
            a(f'v_cvt_pk_bf16_f32 v{110 + 4 * t + d}, v{r + 2 * d}, v{r + 2 * d + 1}')
    for r in range(56):
        a(f'v_mov_b32 v{r}, 0')
    stamp('f1pre')
    wait_cb()
    stamp('bar2')

    def b_loads(m):
        for r in range(2):
            b = (m * 2 + r) * 4
            if m % 5 == 2:
                for h in range(2):
                    a(f'buffer_load_dwordx2 a[{b + 2 * h}:{b + 2 * h + 1}], v{234 + r}, s[{S_Y}:{S_Y + 3}], s{52 + m // 4} offen '
                      f'offset:{(m & 3) * 1024 + 512 * h}{LOAD_SC}', tag=('B', m))
            else:
                a(f'buffer_load_dwordx4 a[{b}:{b + 3}], v{240 + r}, s[{S_Y}:{S_Y + 3}], s{52 + m // 4} offen '
                  f'offset:{(m & 3) * 1024}{LOAD_SC}', tag=('B', m))

    for m in range(20):
        b_loads(m)
    for r in range(2):
        for e in range(2):
            b = 100 + 4 * r + 2 * e
            a(f'buffer_load_dwordx2 v[{b}:{b + 1}], v{238 + r}, s[{S_ST}:{S_ST + 3}], s57 offen offset:{512 * e}{LOAD_SC}')

    stamp('f1b')
    AF = 160

    def a_reads(base_v, off, par):
        out = []
        for c in range(7):
            for sel in range(2):
                r = AF + par * 28 + c * 4 + 2 * sel
                out.append(f'ds_read_b64_tr_b16 a[{r}:{r + 1}], v{base_v} offset:{off + sel * 3584 + 32 * c}')
        return out

    def a_step(m):
        base = m // 9
        return a_reads(230 + base, (m - 9 * base) * 7168, m & 1)

    UA = 140
    def uv_reads(t):
        return a_reads(228 if t < 3 else 229, (t if t < 3 else t - 3) * 28672, t & 1)
    for x in uv_reads(0):
        a(x)
    for t in range(5):
        nxt = uv_reads(t + 1) if t < 4 else []
        a.wait_regs([f'a[{AF + (t & 1) * 28}:{AF + (t & 1) * 28 + 27}]'])
        for c in range(7):
            d = vr(UA + 4 * c, 4)
            a(m16(d, ar(AF + (t & 1) * 28 + 4 * c, 4), vr(110 + 4 * t, 4), '0' if t == 0 else d))
            for x in nxt[2 * c:2 * c + 2]:
                a(x)
    for x in a_step(0):
        a(x)
    a('v_lshlrev_b32 v5, 6, v236')
    a('v_lshl_add_u32 v5, v237, 4, v5')
    a(f's_mul_i32 s37, s{WV}, 896')
    a(f's_add_u32 s37, s37, {UVX}')
    a('v_add_u32 v5, s37, v5')
    a('v_cmp_gt_u32 vcc, 2, v236')
    a.nop(4)
    a('s_and_saveexec_b64 s[40:41], vcc')
    for c in range(7):
        a(f'ds_write_b128 v5, v[{UA + 4 * c}:{UA + 4 * c + 3}] offset:{128 * c}')
    a('s_mov_b64 exec, s[40:41]')
    a('s_waitcnt lgkmcnt(0)')
    a('s_barrier')
    a(f'v_min_u32 v5, 223, v{F_TID}')
    a('v_lshlrev_b32 v5, 2, v5')
    a(f'v_add_u32 v6, {UVX}, v5')
    for w in range(4):
        a(f'ds_read_b32 v{60 + w}, v6 offset:{896 * w}')
    a('v_add_f32 v60, v60, v61')
    a('v_add_f32 v62, v62, v63')
    a('v_add_f32 v60, v60, v62')
    a(f'v_mul_f32 v60, {fhex(LOG2E)}, v60')
    a(f'ds_write_b32 v6, v60 offset:3584')
    a('s_waitcnt lgkmcnt(0)')
    a('s_barrier')
    a('v_lshlrev_b32 v5, 4, v237')
    a(f'v_add_u32 v5, {UVF}, v5')
    for c in range(7):
        a(f'ds_read_b128 v[{140 + 4 * c}:{143 + 4 * c}], v5 offset:{128 * c}')
        a(f'ds_read_b128 v[{170 + 4 * c}:{173 + 4 * c}], v5 offset:{128 * c + 64}')
    for r in (5, 6):
        a(f'v_mov_b32 v{r}, 0')
    stamp('f1uv')

    for m in range(20):
        a.wait_tag_vm(lambda tg: tg == ('B', m))
        nxt = a_step(m + 1) if m + 1 < 20 else []
        a.wait_regs([f'a[{AF + (m & 1) * 28}:{AF + (m & 1) * 28 + 27}]'])
        k = 0
        for c in range(7):
            for r in range(2):
                d = vr((r * 7 + c) * 4, 4)
                bb = (m * 2 + r) * 4
                a(m16(d, ar(AF + (m & 1) * 28 + c * 4, 4), ar(bb, 4), d))
                if nxt:
                    a(nxt[k])
                k += 1
    stamp('f1loop')
    for r in range(2):
        b = 100 + 4 * r
        a(f'v_add_f32 v78, v{b}, v{b + 2}')
        sum_over_g(a, 78, 80)
        a(f'v_mul_f32 v78, {fhex(0.125)}, v78')
        a(f'v_add_f32 v79, v{b + 1}, v{b + 3}')
        for k in range(2):
            a(f'v_sub_f32 v80, v{b + 2 * k}, v78')
            a('v_mul_f32 v80, v80, v80')
            a(f'v_fmac_f32 v79, {fhex(80.0)}, v80')
        sum_over_g(a, 79, 80)
        a(f'v_mov_b32 v80, {fhex(1e-5)}')
        a(f'v_fmac_f32 v80, {fhex(1.0 / 640)}, v79')
        a('v_rsq_f32 v80, v80')
        a.nop(1)
        a(f'v_mul_f32 v{244 + 2 * r}, {fhex(LOG2E)}, v80')
        a(f'v_mul_f32 v{245 + 2 * r}, v78, v80')
    for c in range(7):
        for r in range(2):
            b = (r * 7 + c) * 4
            T = 60 + 8 * r
            for e in range(4):
                a(f'v_fma_f32 v{T + e}, -v{245 + 2 * r}, v{140 + 4 * c + e}, v{170 + 4 * c + e}')
            for e in range(4):
                a(f'v_fma_f32 v{b + e}, v{244 + 2 * r}, v{b + e}, v{T + e}')
            for e in range(4):
                a(f'v_exp_f32 v{T + e}, -v{b + e}')
            for e in range(4):
                a(f'v_add_f32 v{T + e}, 1.0, v{T + e}')
            for e in range(4):
                a(f'v_rcp_f32 v{T + e}, v{T + e}')
            for e in range(4):
                a(f'v_mul_f32 v{b + e}, v{b + e}, v{T + e}')
            hp = 110 + 14 * r + 2 * c
            a(f'v_cvt_pk_bf16_f32 v{hp}, v{b}, v{b + 1}')
            a(f'v_cvt_pk_bf16_f32 v{hp + 1}, v{b + 2}, v{b + 3}')
    for r in range(2):
        a(f's_lshl_b32 s37, s{S_RT4}, 3')
        a(f's_lshl_b32 s38, s{WV}, 1')
        a('s_add_u32 s37, s37, s38')
        a(f's_add_u32 s37, s37, {r}')
        a('s_mul_i32 s37, s37, 54')
        a(f's_lshr_b32 s38, s{S_CT4}, 1')
        a('s_mul_i32 s38, s38, 7')
        a('s_add_u32 s37, s37, s38')
        a(f's_lshl_b32 s{40 + r}, s37, 10')
    srd = f's[{S_H}:{S_H + 3}]'
    a(f's_bitcmp1_b32 s{S_CT4}, 0')
    a(f's_cbranch_scc1 {L}_odd')
    for r in range(2):
        hp = 110 + 14 * r
        for k in range(3):
            a(f'buffer_store_dwordx4 v[{hp + 4 * k}:{hp + 4 * k + 3}], v242, {srd}, s{40 + r} offen offset:{1024 * k}{STORE_SC}')
        a(f'buffer_store_dwordx2 v[{hp + 12}:{hp + 13}], v233, {srd}, s{40 + r} offen offset:3072{STORE_SC}')
    a(f's_branch {L}_sdone')
    a.label(f'{L}_odd')
    for r in range(2):
        hp = 110 + 14 * r
        a(f'buffer_store_dwordx2 v[{hp}:{hp + 1}], v233, {srd}, s{40 + r} offen offset:3584{STORE_SC}')
        a(f's_add_u32 s{42 + r}, s{40 + r}, 4096')
        a(f'buffer_store_dwordx4 v[{hp + 2}:{hp + 5}], v242, {srd}, s{42 + r} offen{STORE_SC}')
    a(f's_cmp_eq_u32 s{S_CT4}, 15')
    a(f's_cbranch_scc1 {L}_sdone')
    for r in range(2):
        hp = 110 + 14 * r
        for k in range(1, 3):
            a(f'buffer_store_dwordx4 v[{hp + 2 + 4 * k}:{hp + 5 + 4 * k}], v242, {srd}, s{42 + r} offen offset:{1024 * k}{STORE_SC}')
    a.label(f'{L}_sdone')
```

```python
import sys, json
sys.path.insert(0, 'dev')
from common import *
import k_prep, k_attn

NAME = 'adaLN_cond__mha_block_cached__dense_activation_silu__prompt'

def build(cfg):
    cfg.setdefault('lmode', 'mfma'); cfg.setdefault('place', 1)
    parts, descs, launches = [], [], []
    stages = cfg.get('stages', ['prep', 'attn'])
    if 'prep' in stages:
        b, d = k_prep.gen_prep('prep_kernel', cfg)
        parts.append(b); descs.append(d)
        launches.append(f'; @launch kernel=prep_kernel grid=({k_prep.PREP_GRID},1,1) block=(256,1,1) lds={k_prep.PREP_LDS}')
    if 'attn' in stages:
        b, d = k_attn.gen_attn(cfg, 'attn_kernel')
        parts.append(b); descs.append(d)
        launches.append(f'; @launch kernel=attn_kernel grid=(256,1,1) block=(256,1,1) lds={k_attn.ATT_LDS}')
    if 'fused' in stages:
        import k_fused
        b, d = k_fused.gen_fused(cfg, NAME + '_kernel')
        parts.append(b); descs.append(d)
        launches.append(f'; @launch grid=(256,1,1) block=(256,1,1) lds={k_fused.LDS_BYTES}')
    try:
        import k_tail
        for st in ('oproj', 'ffn1', 'ffn2'):
            if st in stages:
                b, d, l = k_tail.gen(st, cfg)
                parts.append(b); descs.append(d); launches.append(l)
    except ImportError:
        pass
    hdr = '\n'.join(launches) + '\n'
    hdr = ('; adaLN-conditioned block: mod/LN prep -> fused Q-projection + attention -> O-projection -> FFN\n'
           '; generated by a hand-written generator script (dev/gen.py)\n') + hdr
    txt = hdr + '.amdgcn_target "amdgcn-amd-amdhsa--gfx950"\n.text\n' + '\n'.join(parts)
    txt += '\n.section .rodata,"a"\n'
    for d in descs:
        txt += '.p2align 6\n' + d
    return txt

if __name__ == '__main__':
    out = sys.argv[1]
    cfg = json.loads(sys.argv[2]) if len(sys.argv) > 2 else {}
    open(out, 'w').write(build(cfg))
```

```python
import re

REG_RE = re.compile(r'^(-|\|)?(abs\()?([vas])(\d+|\[(\d+):(\d+)\])\)?\|?$')


def regs_of(tok):
    tok = tok.strip()
    if tok in ('vcc', 'exec', 'm0', 'scc'):
        return [tok]
    if tok in ('vcc_lo', 'vcc_hi'):
        return ['vcc']
    if tok in ('exec_lo', 'exec_hi'):
        return ['exec']
    t = tok
    if t.startswith('-'):
        t = t[1:]
    if t.startswith('abs(') and t.endswith(')'):
        t = t[4:-1]
    if t.startswith('|') and t.endswith('|'):
        t = t[1:-1]
    m = re.match(r'^([vas])(\d+)$', t)
    if m:
        return [m.group(1) + m.group(2)]
    m = re.match(r'^([vas])\[(\d+):(\d+)\]$', t)
    if m:
        return [m.group(1) + str(i) for i in range(int(m.group(2)), int(m.group(3)) + 1)]
    return []


def split_ops(s):
    out, depth, cur = [], 0, ''
    for ch in s:
        if ch == '[' or ch == '(':
            depth += 1
        if ch == ']' or ch == ')':
            depth -= 1
        if ch == ',' and depth == 0:
            out.append(cur.strip())
            cur = ''
        else:
            cur += ch
    if cur.strip():
        out.append(cur.strip())
    return out


TRANS = ('v_exp_f32', 'v_log_f32', 'v_rcp_f32', 'v_rsq_f32', 'v_sqrt_f32', 'v_sin_f32', 'v_cos_f32',
         'v_rcp_iflag_f32')
NO_DST_S = ('s_waitcnt', 's_barrier', 's_nop', 's_branch', 's_cbranch', 's_setprio', 's_endpgm', 's_sleep',
            's_cmp', 's_bitcmp', 's_setreg', 's_sendmsg')


class Ins:
    __slots__ = ('text', 'op', 'kind', 'reads', 'writes', 'tag', 'dpp', 'passes', 'srcC', 'srcAB', 'wide_store',
                 'comment')

    def __init__(self, text, tag=None):
        self.text = text.strip()
        self.tag = tag
        self.reads, self.writes = set(), set()
        self.dpp = False
        self.passes = 0
        self.srcC = set()
        self.srcAB = set()
        self.wide_store = set()
        t = self.text
        if t.endswith(':') or t.startswith('.') or t.startswith(';') or t == '':
            self.op, self.kind = '', 'label' if t.endswith(':') else 'meta'
            return
        parts = t.split(None, 1)
        op = parts[0]
        self.op = op
        rest = parts[1] if len(parts) > 1 else ''
        rest = rest.split(';')[0]
        ops = split_ops(rest)
        mods = []
        if ops:
            toks = ops[-1].split()
            ops[-1] = toks[0] if toks else ''
            mods = toks[1:]
        R = [regs_of(o) for o in ops]
        base = re.sub(r'_(e32|e64|dpp|sdwa)$', '', op)
        if any(m.startswith(('row_', 'quad_perm', 'wave_')) for m in mods):
            self.dpp = True

        def rd(*idx):
            for i in idx:
                if i < len(R):
                    self.reads.update(R[i])

        def wr(*idx):
            for i in idx:
                if i < len(R):
                    self.writes.update(R[i])

        n = len(R)
        if op.startswith('v_mfma'):
            self.kind = 'mfma'
            self.passes = 8 if '32x32' in op else 4
            wr(0)
            rd(1, 2, 3)
            self.srcC = set(R[3])
            self.srcAB = set(R[1]) | set(R[2])
        elif op.startswith('v_'):
            self.kind = 'trans' if base in TRANS else 'valu'
            if base.startswith('v_cmpx'):
                wr(0)
                self.writes.add('exec')
                rd(*range(1, n))
            elif base.startswith('v_cmp'):
                wr(0)
                rd(*range(1, n))
            elif base.startswith('v_permlane') and 'swap' in base:
                self.kind = 'permlane'
                wr(0, 1)
                rd(0, 1)
            elif base in ('v_fmac_f32', 'v_dot2c_f32_bf16', 'v_pk_fmac_f16', 'v_writelane_b32'):
                wr(0)
                rd(*range(0, n))
            elif base in ('v_add_co_u32', 'v_sub_co_u32', 'v_addc_co_u32', 'v_subb_co_u32', 'v_subrev_co_u32',
                          'v_mad_u64_u32', 'v_div_scale_f32'):
                wr(0, 1)
                rd(*range(2, n))
            elif base in ('v_readfirstlane_b32', 'v_readlane_b32'):
                self.kind = 'readlane'
                wr(0)
                rd(*range(1, n))
            else:
                wr(0)
                rd(*range(1, n))
                if self.dpp:
                    rd(0)
            self.reads.add('exec')
        elif op.startswith('s_load') or op.startswith('s_buffer_load') or op.startswith('s_mem'):
            self.kind = 'smem'
            wr(0)
            rd(*range(1, n))
        elif op.startswith('s_'):
            self.kind = 'salu'
            if op.startswith('s_waitcnt'):
                self.kind = 'wait'
            elif op.startswith('s_barrier'):
                self.kind = 'barrier'
            elif op.startswith('s_nop'):
                self.kind = 'nop'
            elif op.startswith('s_branch') or op.startswith('s_cbranch') or op.startswith('s_endpgm'):
                self.kind = 'branch'
            elif op.startswith(NO_DST_S):
                rd(*range(0, n))
            else:
                wr(0)
                rd(*range(1, n))
                if 'saveexec' in op:
                    self.writes.add('exec')
                    self.reads.add('exec')
        elif op.startswith('ds_'):
            if op.startswith('ds_read') or op.startswith('ds_bpermute') or op.startswith('ds_swizzle') \
                    or op.startswith('ds_permute'):
                self.kind = 'dsread'
                wr(0)
                rd(*range(1, n))
            else:
                self.kind = 'dswrite'
                rd(*range(0, n))
        elif op.startswith('buffer_') or op.startswith('global_'):
            is_lds = 'lds' in mods or '_lds_' in op
            if is_lds:
                self.kind = 'dma'
                rd(*range(0, n))
                self.reads.add('m0')
            elif '_load' in op:
                self.kind = 'vload'
                wr(0)
                rd(*range(1, n))
            elif '_store' in op:
                self.kind = 'vstore'
                rd(*range(0, n))
                if op.endswith('x4') or op.endswith('x3'):
                    self.wide_store = set(R[0] if op.startswith('buffer') else R[1])
            elif '_atomic' in op:
                self.kind = 'vload' if 'sc0' in mods else 'vstore'
                rd(*range(0, n))
                if 'sc0' in mods:
                    wr(0)
            else:
                self.kind = 'vmisc'
        else:
            raise ValueError('unknown instruction: ' + t)

    def states(self):
        if self.kind in ('label', 'meta'):
            return 0
        if self.kind == 'nop':
            return int(self.text.split()[1], 0) + 1
        return 1


VM_KINDS = ('vload', 'vstore', 'dma', 'vmisc')
LGKM_KINDS = ('dsread', 'dswrite', 'smem')


class Asm:
    def __init__(self, auto_wait=True):
        self.ins = []
        self.vmq = []
        self.lgq = []
        self.auto_wait = auto_wait
        self.nwaits = 0
        self.bg = []
        self.bg_period = 8
        self._bg_cnt = 0
        self._in_bg = False

    def raw(self, text):
        self.ins.append(Ins(text))

    def label(self, name):
        self.ins.append(Ins(name + ':'))

    def comment(self, c):
        self.ins.append(Ins('; ' + c))

    def _need(self, q, regs):
        idx = -1
        for i, p in enumerate(q):
            if p.writes & regs:
                idx = i
        return idx

    def _emit_wait(self, vm=None, lg=None):
        s = 's_waitcnt'
        if vm is not None:
            assert 0 <= vm <= 63, vm
            s += f' vmcnt({vm})'
        if lg is not None:
            assert 0 <= lg <= 15, lg
            s += f' lgkmcnt({lg})'
        self.ins.append(Ins(s))
        self.nwaits += 1
        if vm is not None:
            self.vmq = self.vmq[len(self.vmq) - vm:] if vm < len(self.vmq) else self.vmq
            if vm == 0:
                self.vmq = []
        if lg is not None:
            if lg == 0:
                self.lgq = []
            elif lg < len(self.lgq):
                self.lgq = self.lgq[len(self.lgq) - lg:]

    def _lg_count(self, idx):
        if any(p.kind == 'smem' for p in self.lgq):
            return 0
        n = len(self.lgq) - 1 - idx
        return min(n, 15)

    def __call__(self, text, tag=None):
        for line in text.split('\n'):
            line = line.strip()
            if not line:
                continue
            i = Ins(line, tag)
            if i.kind in ('label', 'meta'):
                self.ins.append(i)
                continue
            if i.kind == 'wait':
                vm = re.search(r'vmcnt\((\d+)\)', line)
                lg = re.search(r'lgkmcnt\((\d+)\)', line)
                self._emit_wait(int(vm.group(1)) if vm else None, int(lg.group(1)) if lg else None)
                continue
            if self.auto_wait:
                regs = (i.reads | i.writes) - {'exec', 'scc'}
                iv = self._need(self.vmq, regs)
                il = self._need(self.lgq, regs)
                vm = lg = None
                if iv >= 0:
                    vm = min(len(self.vmq) - 1 - iv, 63)
                if il >= 0:
                    lg = self._lg_count(il)
                if vm is not None or lg is not None:
                    self._emit_wait(vm, lg)
            self.ins.append(i)
            if i.kind in VM_KINDS:
                self.vmq.append(i)
            elif i.kind in LGKM_KINDS:
                self.lgq.append(i)
            if self.bg and not self._in_bg and i.kind in ('valu', 'mfma') and 'vcc' not in i.writes:
                self._bg_cnt += 1
                if self._bg_cnt >= self.bg_period:
                    self._bg_cnt = 0
                    self._emit_bg()

    def _emit_bg(self):
        g = self.bg.pop(0)
        self._in_bg = True
        for x in g:
            if isinstance(x, tuple):
                self(x[0], tag=x[1])
            else:
                self(x)
        self._in_bg = False

    def set_bg(self, groups, period):
        assert not self.bg
        self.bg = list(groups)
        self.bg_period = period
        self._bg_cnt = 0

    def flush_bg(self):
        while self.bg:
            self._emit_bg()

    def wait_tag_vm(self, pred):
        idx = -1
        for i, p in enumerate(self.vmq):
            if p.tag is not None and pred(p.tag):
                idx = i
        if idx >= 0:
            self._emit_wait(vm=min(len(self.vmq) - 1 - idx, 63))

    def wait_tag_lg(self, pred):
        idx = -1
        for i, p in enumerate(self.lgq):
            if p.tag is not None and pred(p.tag):
                idx = i
        if idx >= 0:
            self._emit_wait(lg=self._lg_count(idx))

    def wait_regs(self, regs):
        s = set()
        for r in regs:
            s.update(regs_of(r))
        iv = self._need(self.vmq, s)
        il = self._need(self.lgq, s)
        vm = lg = None
        if iv >= 0:
            vm = min(len(self.vmq) - 1 - iv, 63)
        if il >= 0:
            lg = self._lg_count(il)
        if vm is not None or lg is not None:
            self._emit_wait(vm, lg)

    def wait_all(self, vm=True, lg=True):
        self._emit_wait(0 if vm else None, 0 if lg else None)

    def nop(self, n=1):
        while n > 0:
            k = min(n, 16)
            self.ins.append(Ins(f's_nop {k - 1}'))
            n -= k

    def mark(self, name):
        self.ins.append(Ins(f';@{name}'))

    def text(self):
        out = []
        for i in self.ins:
            if i.kind == 'label':
                out.append(i.text)
            else:
                out.append('    ' + i.text)
        return '\n'.join(out) + '\n'

    def check(self, verbose=True, start=0):
        ins = [i for i in self.ins[start:]]
        errs = []
        n = len(ins)
        WIN = 24
        for j in range(n):
            c = ins[j]
            if c.kind in ('label', 'meta', 'nop', 'wait', 'barrier'):
                continue
            dist = 0
            k = j - 1
            while k >= 0 and dist < WIN:
                p = ins[k]
                need = hazard(p, c)
                if need > dist:
                    errs.append((j, need, dist, p.text, c.text))
                dist += p.states()
                k -= 1
        if verbose:
            for e in errs[:40]:
                print('HAZARD need %d have %d:\n    %s\n    %s' % (e[1], e[2], e[3], e[4]))
        return errs


def is_valu(i):
    return i.kind in ('valu', 'trans', 'permlane', 'readlane')


def vregs(s):
    return {r for r in s if r[0] in 'va' and r not in ('vcc',)}


def sregs(s):
    return {r for r in s if (r[0] == 's' and r != 'scc') or r == 'vcc'}


def hazard(p, c):
    need = 0
    if p.kind == 'mfma':
        D = p.writes
        big = p.passes == 8
        if c.kind == 'mfma':
            if c.srcC & D:
                if c.srcC == D and c.passes == p.passes:
                    pass
                else:
                    need = max(need, 10 if big else 6)
            if c.srcAB & D:
                need = max(need, 12 if big else 8)
            if (c.writes & D) and not (c.srcC == D):
                if c.passes != p.passes:
                    need = max(need, 10 if big else 6)
        else:
            if (c.reads | c.writes) & D:
                need = max(need, 12 if big else 8)
        if is_valu(c) and (c.writes & p.srcC):
            need = max(need, 7 if big else 3)
    if is_valu(p):
        W = vregs(p.writes)
        if c.kind == 'mfma' and (c.reads & W):
            need = max(need, 2)
        if c.kind == 'permlane' and (c.reads & W):
            need = max(need, 2)
        if c.dpp and (c.reads & W):
            need = max(need, 2)
        if c.kind == 'readlane' and (c.reads & W):
            need = max(need, 1)
        if p.kind == 'trans' and is_valu(c) and c.kind != 'trans' and (c.reads & W):
            need = max(need, 1)
        if p.kind == 'trans' and c.kind == 'trans' and (c.reads & W):
            need = max(need, 1)
        S = sregs(p.writes)
        if S:
            if is_valu(c) and (c.reads & S):
                need = max(need, 4 if c.kind == 'readlane' else 2)
            if c.kind in VM_KINDS and (c.reads & S):
                need = max(need, 5)
            if c.kind == 'smem' and (c.reads & S):
                need = max(need, 4)
        if 'exec' in p.writes:
            if c.dpp:
                need = max(need, 5)
            if c.kind in ('mfma', 'permlane', 'readlane'):
                need = max(need, 4)
    if p.kind == 'salu' and 'm0' in p.writes and c.kind == 'dma':
        need = max(need, 1)
    if p.wide_store:
        if c.writes & p.wide_store:
            need = max(need, 2 if is_valu(c) else 1)
    return need


def _split_waits(group):
    out = []
    vm = lg = None
    for l in group:
        t = l.strip()
        if t.startswith('s_waitcnt'):
            m = re.search(r'vmcnt\((\d+)\)', t)
            if m:
                vm = int(m.group(1)) if vm is None else min(vm, int(m.group(1)))
            m = re.search(r'lgkmcnt\((\d+)\)', t)
            if m:
                lg = int(m.group(1)) if lg is None else min(lg, int(m.group(1)))
        else:
            out.append((vm, lg, l))
            vm = lg = None
    out.append((vm, lg, None))
    return out


def _merge(groups):
    sp = [_split_waits(g) for g in groups]
    out = []
    for items in zip(*sp):
        vms = [x[0] for x in items if x[0] is not None]
        lgs = [x[1] for x in items if x[1] is not None]
        if vms or lgs:
            s = '    s_waitcnt'
            if vms:
                s += f' vmcnt({min(vms)})'
            if lgs:
                s += f' lgkmcnt({min(lgs)})'
            out.append(s)
        if items[0][2] is not None:
            out.append(items[0][2])
    return out


def fold_loops(lines, prefix, counter_sreg, label):
    idx = [i for i, l in enumerate(lines) if l.strip().startswith(';@' + prefix)]
    groups = []
    for a, b in zip(idx[:-1], idx[1:]):
        groups.append(lines[a + 1:b])
    key = [[x[2] for x in _split_waits(g)] for g in groups]
    best = (0, 0)
    i = 0
    while i < len(groups):
        j = i
        while j + 1 < len(groups) and key[j + 1] == key[i]:
            j += 1
        if j - i + 1 > best[1]:
            best = (i, j - i + 1)
        i = j + 1
    s, cnt = best
    out = lines[:idx[0]]
    for g in range(len(groups)):
        if cnt > 1 and g == s:
            out.append(f'    s_mov_b32 {counter_sreg}, {cnt}')
            out.append(f'{label}:')
            out += _merge(groups[s:s + cnt])
            out.append(f'    s_sub_u32 {counter_sreg}, {counter_sreg}, 1')
            out.append(f'    s_cmp_lg_u32 {counter_sreg}, 0')
            out.append(f'    s_cbranch_scc1 {label}')
        elif cnt > 1 and s < g < s + cnt:
            continue
        else:
            out += groups[g]
    out += lines[idx[-1] + 1:]
    return out, (s, cnt, len(groups))
```

```python
from common import *

LOAD_SC = ''
STORE_SC = ''
ATT_LDS = 163840
SB_OFF = 131072
FLAG_OFF = SB_OFF + 5120

S_K, S_V, S_W, S_X, S_O, S_M = 8, 12, 16, 20, 24, 28
S_WAVE, S_HEAD, S_QBLK, S_M0B = 32, 33, 34, 35
S_KOFF, S_CNT, S_TMP, S_MAX = 36, 38, 39, 37
S_XOFF = 44
S_WITEM, S_T1, S_T2, S_M0A, S_M0C = 48, 49, 50, 51, 52
S_ADJ = 62
S_TS = 60

V_XN = 128
V_H = 192
V_SB = 200
V_T = 232
V_WA = 236
V_KD = 244
V_XA, V_SBA = 248, 254
V_WD = 250
V_VD = 252
V_TID = 249
V_TMP = 255

V_S = 128
V_P = 144
V_E = 152
V_L = 160
V_KA = 164
V_VA = 236
V_X = 176

A_Q = 0
A_KF = 64
A_VF = 128
A_L = 192
A_ONE = 208
A_ZERO = 212


def O(qb, db):
    return (qb * 8 + db) * 4


def KF(par, kb, ds):
    return A_KF + par * 32 + (kb * 4 + ds) * 4


def WF(par, db):
    return A_KF + par * 32 + db * 4


def VF(par, db):
    return A_VF + par * 32 + db * 4


def QF(qb, ds):
    return A_Q + (qb * 4 + ds) * 4


def mfma(d, a_, b_, c):
    return f'v_mfma_f32_16x16x32_bf16 {d}, {a_}, {b_}, {c}'


class Stream:
    def __init__(self, a):
        self.a = a

    def run(self, slots):
        for m, fill in slots:
            if m is not None:
                self.a(m)
            for f in fill:
                if callable(f):
                    f()
                else:
                    self.a(f[0], tag=f[1]) if isinstance(f, tuple) else self.a(f)


def ts(a, cfg, idx):
    if cfg.get('ts'):
        a(f's_memtime s[{S_TS + 4 * idx}:{S_TS + 4 * idx + 1}]')
        a(f's_memrealtime s[{S_TS + 4 * idx + 2}:{S_TS + 4 * idx + 3}]')
        a('s_waitcnt lgkmcnt(0)')


def k_dma(j, tag):
    return (f'buffer_load_dwordx4 v{V_KD + j}, s[{S_K}:{S_K + 3}], s{S_TMP} offen offset:{1024 * j} lds', tag)


def v_dma(j, tag):
    return (f'buffer_load_dwordx4 v{V_VD + (j & 1)}, s[{S_V}:{S_V + 3}], s{S_TMP} offen offset:{1024 * j} lds', tag)


def slot_of(T):
    return (T + 1) % 4


def gen_setup(a, cfg):
    a('s_cmp_ge_u32 s2, 256')
    a('s_cbranch_scc1 L_attn_done')
    load_ptr(a, 4, KA_K)
    load_ptr(a, 6, KA_V)
    load_ptr(a, 40, KA_WQ)
    load_ptr(a, 42, KA_WS)
    a(f'v_mov_b32 v{V_TID}, v0')
    a(f'v_lshrrev_b32 v{V_TMP}, 6, v0')
    a('s_and_b32 s3, s2, 7')
    a('s_lshl_b32 s3, s3, 2')
    a(f's_bfe_u32 s{S_HEAD}, s2, 0x20003')
    a(f's_add_u32 s{S_HEAD}, s{S_HEAD}, s3')
    a(f's_lshr_b32 s{S_QBLK}, s2, 5')
    a(f'v_readfirstlane_b32 s{S_WAVE}, v{V_TMP}')
    a('s_waitcnt lgkmcnt(0)')
    a(f's_lshl_b32 s3, s{S_HEAD}, 19')
    make_srd(a, S_K, 4, 0, 524288, 's3')
    make_srd(a, S_V, 6, 0, 524288, 's3')
    a(f's_lshl_b32 s3, s{S_HEAD}, 8')
    a(f's_sub_u32 s{S_TMP}, {640 * 8192}, s3')
    make_srd(a, S_W, 40, 0, f's{S_TMP}', 's3')
    make_srd(a, S_X, 42, WS_XN, SZ_XN)
    make_srd(a, S_O, 42, WS_O, SZ_O)
    make_srd(a, S_M, 42, WS_MOD, SZ_MOD)
    a(f's_lshl_b32 s{S_M0B}, s{S_WAVE}, 12')
    T = V_TMP
    tid = V_TID
    a(f'v_lshlrev_b32 v{T}, 4, v{tid}')
    a(f'buffer_load_dwordx4 v[0:3], v{T}, s[{S_M}:{S_M + 3}], 0 offen', tag='mod')
    a(f'buffer_load_dwordx4 v[4:7], v{T}, s[{S_M}:{S_M + 3}], 0 offen offset:2560', tag='mod')
    a(f'v_and_b32 v8, 63, v{tid}')
    a('v_lshrrev_b32 v9, 4, v8')
    a('v_and_b32 v10, 15, v8')
    a(f's_lshl_b32 s3, s{S_WAVE}, 4')
    a('v_add_u32 v11, s3, v9')
    a('v_lshlrev_b32 v12, 2, v9')
    a('v_xor_b32 v12, v12, v10')
    a('v_lshlrev_b32 v12, 4, v12')
    a(f'v_lshl_add_u32 v{V_WD}, v11, 13, v12')
    item_dma_now(a, 0)
    a(f's_lshl_b32 s3, s{S_QBLK}, 4')
    a(f's_lshl_b32 s{S_TMP}, s{S_WAVE}, 2')
    a(f's_add_u32 s3, s3, s{S_TMP}')
    a('s_mul_i32 s3, s3, 20480')
    a('v_lshlrev_b32 v12, 4, v8')
    a(f'v_add_u32 v{V_XA}, s3, v12')
    for qb in range(4):
        a(f's_mov_b32 s{S_XOFF + qb}, {qb * 20480}')
    for U in range(4):
        a(xn_load(U), tag=('xn', U))
    item_dma_now(a, 1)
    for U in range(4, 16):
        a(xn_load(U), tag=('xn', U))
    for qb in range(4):
        a(f's_add_u32 s{S_XOFF + qb}, s{S_XOFF + qb}, 4096')
    for j in range(4):
        a(f'v_add_u32 v12, {4 * j}, v9')
        a('v_xor_b32 v12, v12, v10')
        a('v_lshlrev_b32 v12, 4, v12')
        a(f'v_lshl_add_u32 v{V_KD + j}, v11, 8, v12')
    for j in range(2):
        a(f'v_add_u32 v12, {4 * j}, v9')
        a('v_lshlrev_b32 v12, 1, v12')
        a('v_xor_b32 v12, v12, v10')
        a('v_lshlrev_b32 v12, 4, v12')
        a(f'v_lshl_add_u32 v{V_VD + j}, v11, 8, v12')
    a(f's_cmp_ge_u32 s{S_WAVE}, 2')
    a(f's_cselect_b32 s{S_ADJ}, 8192, 0')
    a(f's_sub_u32 s{S_MAX}, {524288 - 4096}, s{S_M0B}')
    a(f's_mov_b32 m0, s{S_M0B}')
    for j in range(4):
        a(f'v_subrev_u32 v{12 + j}, s{S_ADJ}, v{V_KD + j}')
    for j in range(4):
        a(f'buffer_load_dwordx4 v{12 + j}, s[{S_K}:{S_K + 3}], 0 offen offset:{1024 * j} lds', tag=('K', -1))
    a(f's_add_u32 m0, s{S_M0B}, {16384 * slot_of(0)}')
    a(f's_movk_i32 s{S_TMP}, 8192')
    for j in range(4):
        a(*k_dma(j, ('K', 0)))
    a('v_lshrrev_b32 v12, 2, v10')
    a('v_lshl_add_u32 v13, v9, 3, v12')
    a('v_lshlrev_b32 v13, 8, v13')
    a('v_and_b32 v14, 3, v10')
    a('v_lshl_add_u32 v13, v14, 4, v13')
    a('v_add_u32 v13, 98304, v13')
    for ds in range(4):
        a(f'v_xor_b32 v14, {ds}, v12')
        a(f'v_lshl_add_u32 v{V_WA + ds}, v14, 6, v13')
    a(f'v_lshlrev_b32 v{V_SBA}, 5, v9')
    a(f'v_add_u32 v{V_SBA}, {SB_OFF}, v{V_SBA}')
    for e in range(4):
        a(f'v_add_f32 v{4 + e}, 1.0, v{4 + e}')
    a('v_cvt_pk_bf16_f32 v12, v4, v5')
    a('v_cvt_pk_bf16_f32 v13, v6, v7')
    a('v_lshlrev_b32 v4, 16, v12')
    a('v_and_b32 v5, 0xffff0000, v12')
    a('v_lshlrev_b32 v6, 16, v13')
    a('v_and_b32 v7, 0xffff0000, v13')
    for e in range(4):
        a(f'v_mul_f32 v{e}, {fhex(QSCALE)}, v{e}')
    a(f'v_lshlrev_b32 v12, 4, v{tid}')
    a(f'v_add_u32 v12, {SB_OFF}, v12')
    a(f'v_cmp_gt_u32 vcc, 160, v{tid}')
    a('s_and_saveexec_b64 s[54:55], vcc')
    a('ds_write_b128 v12, v[4:7]')
    a('ds_write_b128 v12, v[0:3] offset:2560')
    a('s_mov_b64 exec, s[54:55]')
    for r in range(32):
        a(f'v_accvgpr_write_b32 a{VF(1, 0) + r}, 0')
    for r in range(4):
        a(f'v_accvgpr_write_b32 a{A_ZERO + r}, 0')
    a(f'v_mov_b32 v12, 0x3f803f80')
    for r in range(4):
        a(f'v_accvgpr_write_b32 a{A_ONE + r}, v12')
    for r in range(16):
        a(f'v_accvgpr_write_b32 a{A_L + r}, 0')
    for r in range(128):
        a(f'v_mov_b32 v{r}, 0')
    a(f's_add_u32 s{S_M0A}, s{S_M0B}, {65536 + 16384}')
    a(f's_add_u32 s{S_M0C}, s{S_M0B}, {65536 + 32768}')
    a(f's_mov_b32 s{S_WITEM}, {3 * 524288}')


def xn_load(U):
    kap, qb = U // 4, U % 4
    r = V_XN + (U % 16) * 4
    return (f'buffer_load_dwordx4 v[{r}:{r + 3}], v{V_XA}, s[{S_X}:{S_X + 3}], s{S_XOFF + qb} offen '
            f'offset:{(kap & 3) * 1024}' + LOAD_SC)


def item_dma_now(a, c):
    a(f's_add_u32 m0, s{S_M0B}, {65536 + ((c + 2) % 4) * 16384}')
    for j in range(4):
        a(f's_mov_b32 s{S_T1}, {c * 524288 + j * 31744}')
        a(f'buffer_load_dwordx4 v{V_WD + (j & 1)}, s[{S_W}:{S_W + 3}], s{S_T1} offen offset:{1024 * j} lds', tag=('item', c))


def wf_reads(kap):
    out = []
    c = kap // 2
    for db in range(8):
        for sel in range(2):
            off = (c & 1) * 16384 + (kap & 1) * 8192 + sel * 4096
            r = WF(kap & 1, db) + 2 * sel
            out.append(f'ds_read_b64_tr_b16 a[{r}:{r + 1}], v{V_WA + db} offset:{off}')
    return out


def sb_reads(kap):
    base = V_SB + (kap & 1) * 16
    o = (kap & 3) * 128
    return [f'ds_read_b128 v[{base}:{base + 3}], v{V_SBA} offset:{o}',
            f'ds_read_b128 v[{base + 8}:{base + 11}], v{V_SBA} offset:{o + 2560}',
            f'ds_read_b128 v[{base + 4}:{base + 7}], v{V_SBA} offset:{o + 64}',
            f'ds_read_b128 v[{base + 12}:{base + 15}], v{V_SBA} offset:{o + 2624}']


def mod_x(U, el):
    kap = U // 4
    x = V_XN + (U % 16) * 4 + (el >> 1)
    sb = V_SB + (kap & 1) * 16
    t = V_T + ((el >> 1) & 1) * 2 + (el & 1)
    return (f'v_fma_mix_f32 v{t}, v{x}, v{sb + el}, v{sb + 8 + el} op_sel:[{el & 1},0,0] op_sel_hi:[1,0,0]')


def mod_c(U, d):
    t = V_T + (d & 1) * 2
    return f'v_cvt_pk_bf16_f32 v{V_H + (U & 1) * 4 + d}, v{t}, v{t + 1}'


def kf_reads(u):
    T, half = (u - 1) // 2, (u - 1) & 1
    out = []
    for kb in range(2):
        for ds in range(4):
            off = slot_of(T) * 16384 + (32 * half + 16 * kb) * 256
            r = KF(u & 1, kb, ds)
            out.append(f'ds_read_b128 a[{r}:{r + 3}], v{V_KA + ds} offset:{off}')
    return out


def vf_reads(u):
    T, half = (u - 1) // 2, (u - 1) & 1
    out = []
    for db in range(8):
        for sel in range(2):
            off = slot_of(T) * 16384 + (32 * half + 16 * sel) * 256
            r = VF(u & 1, db) + 2 * sel
            out.append(f'ds_read_b64_tr_b16 a[{r}:{r + 1}], v{V_VA + db} offset:{off}')
    return out


def gen_qproj(a, cfg, fused=False, mid_cb=None, pre_cb=None):
    st = Stream(a)
    a.wait_tag_vm(lambda t: t == ('item', 0))
    a('s_waitcnt lgkmcnt(0)')
    a('s_barrier')
    a(f's_add_u32 m0, s{S_M0B}, {65536 + 0 * 16384}')
    for j in range(4):
        a(f's_mov_b32 s{S_T1}, {2 * 524288 + j * 31744}')
        a(f'buffer_load_dwordx4 v{V_WD + (j & 1)}, s[{S_W}:{S_W + 3}], s{S_T1} offen offset:{1024 * j} lds', tag=('item', 2))
    for r in sb_reads(0):
        a(r)
    for r in wf_reads(0):
        a(r)
    for d in range(4):
        a(mod_x(0, 2 * d))
        a(mod_x(0, 2 * d + 1))
        a(mod_c(0, d))
    a(mod_x(1, 0))
    a(mod_x(1, 1))
    a.wait_regs([f'a[{WF(0, 0)}:{WF(0, 0) + 31}]'])
    ts(a, cfg, 1)
    if pre_cb:
        pre_cb()
    for kap in range(20):
        if kap == 12 and mid_cb is not None:
            a.mark('qpend')
            mid_cb()
        if kap % 4 == 0 and (kap < 12 or mid_cb is None):
            a.mark(f'qp{kap // 4}')
        if kap < 19:
            rd = wf_reads(kap + 1)
        else:
            rd = kf_reads(0) + vf_reads(0)
        sbr = sb_reads(kap + 1) if kap < 19 else []
        c = (kap + 1) // 2
        dma = []
        pre = []
        if kap % 2 == 1:
            item = c + 2
            if kap < 19:
                pre.append(lambda c=c: a.wait_tag_vm(lambda t: t == ('item', c)))
            else:
                pre.append(lambda: a.wait_tag_vm(lambda t: t in (('K', -1), ('V', -1))))
            pre.append('s_barrier')
            if kap % 4 == 3 and kap < 19:
                pre.append(f'v_add_u32 v{V_SBA}, 512, v{V_SBA}')
                for db in range(8):
                    pre.append(f'v_xor_b32 v{V_WA + db}, 0x8000, v{V_WA + db}')
            if kap == 19:
                pass
            if item <= 9:
                m0s = S_M0A if kap % 4 == 1 else S_M0C
                for j in range(4):
                    dma.append(([f's_mov_b32 m0, s{m0s}'] if j == 0 else []) +
                               [f's_add_u32 s{S_T1}, s{S_WITEM}, {j * 31744}'] +
                               [(f'buffer_load_dwordx4 v{V_WD + (j & 1)}, s[{S_W}:{S_W + 3}], s{S_T1} offen '
                                 f'offset:{1024 * j} lds', ('item', item))] +
                               ([f's_add_u32 s{S_WITEM}, s{S_WITEM}, 524288'] if j == 3 else []))
            elif item == 10:
                for j in range(4):
                    dma.append(([f's_add_u32 m0, s{S_M0B}, 65536'] if j == 0 else []) +
                               [f'v_subrev_u32 v{V_TMP}, s{S_ADJ}, v{V_VD + (j & 1)}',
                                (f'buffer_load_dwordx4 v{V_TMP}, s[{S_V}:{S_V + 3}], 0 offen offset:{1024 * j} lds',
                                 ('V', -1))])
            elif item == 11:
                for j in range(4):
                    dma.append(([f's_add_u32 m0, s{S_M0B}, {65536 + slot_of(0) * 16384}',
                                 f's_movk_i32 s{S_TMP}, 8192'] if j == 0 else []) + [v_dma(j, ('V', 0))])
            elif item == 12:
                for j in range(4):
                    dma.append(([f's_add_u32 m0, s{S_M0B}, {slot_of(1) * 16384}',
                                 f's_movk_i32 s{S_TMP}, {8192 + 16384}'] if j == 0 else []) + [k_dma(j, ('K', 1))])
                for j in range(4):
                    dma.append(([f's_add_u32 m0, s{S_M0B}, {65536 + slot_of(1) * 16384}', 's_nop 0'] if j == 0 else []) +
                               [v_dma(j, ('V', 1))])
        if kap == 19:
            gen_attn_addrs(a)
        nrd = len(rd)
        for qb in range(4):
            U = 4 * kap + qb
            B = vr(V_H + (U & 1) * 4, 4)
            gaps = [[] for _ in range(8)]
            have1 = U + 1 < 80
            have2 = U + 2 < 80
            cut = [0, 4, 8, 14, 16] if nrd == 16 else [0, 7, 14, 21, 24]
            my_rd = rd[cut[qb]:cut[qb + 1]]
            order = [0, 2, 4, 6, 1, 3, 5] if qb < 3 else [0, 1, 2]
            for n_, r in enumerate(my_rd):
                gaps[order[n_]].append(r)
            if qb < 2:
                for r in sbr[2 * qb:2 * qb + 2]:
                    gaps[1 + 2 * (sbr.index(r) & 1)].append(r)
            if dma and cfg.get('qp_nodma') and kap < 14:
                dma = []
            if dma:
                nd = len(dma) // 4
                for dd in dma[qb * nd:(qb + 1) * nd]:
                    gaps[5].extend(dd)
            if U + 16 < 80 and not cfg.get('qp_noxn'):
                gaps[7].append((xn_load(U + 16), ('xn', U + 16)))
            if cfg.get('qp_nomod'):
                have1 = have2 = False
            if have1:
                gaps[0].append(mod_c(U + 1, 0))
                gaps[1] += [mod_x(U + 1, 2), mod_x(U + 1, 3)]
                gaps[2].append(mod_c(U + 1, 1))
                gaps[3] += [mod_x(U + 1, 4), mod_x(U + 1, 5)]
                gaps[4].append(mod_c(U + 1, 2))
                gaps[5] += [mod_x(U + 1, 6), mod_x(U + 1, 7)]
                gaps[6].append(mod_c(U + 1, 3))
            if have2:
                gaps[7] += [mod_x(U + 2, 0), mod_x(U + 2, 1)]
            elif have1:
                gaps[7].append('s_nop 1')
            if qb == 0:
                gaps[0] = pre + gaps[0]
                a.wait_regs([f'a[{WF(kap & 1, 0)}:{WF(kap & 1, 0) + 31}]'])
            slots = []
            for db in range(8):
                d = vr(O(qb, db), 4)
                slots.append((mfma(d, ar(WF(kap & 1, db), 4), B, d), gaps[db]))
            st.run(slots)
        if kap % 4 == 3:
            for qb in range(4):
                a(f's_add_u32 s{S_XOFF + qb}, s{S_XOFF + qb}, 4096')
            a(f's_xor_b32 s{S_M0A}, s{S_M0A}, 32768')
            a(f's_xor_b32 s{S_M0C}, s{S_M0C}, 32768')
    if mid_cb is None:
        a.mark('qpend')


def gen_attn_addrs(a):
    t = 168
    a(f'v_and_b32 v{t}, 15, v{V_TID}')
    a(f'v_bfe_u32 v{t + 1}, v{V_TID}, 4, 2')
    for ds in range(4):
        a(f'v_add_u32 v{t + 2}, {4 * ds}, v{t + 1}')
        a(f'v_xor_b32 v{t + 2}, v{t + 2}, v{t}')
        a(f'v_lshlrev_b32 v{t + 2}, 4, v{t + 2}')
        a(f'v_lshl_add_u32 v{V_KA + ds}, v{t}, 8, v{t + 2}')
    for db in range(8):
        a(f'v_xor_b32 v{V_VA + db}, 0x8000, v{V_VA + db}')


def gen_p2(a, cfg):
    a.nop(8)
    t = V_X
    for qb in range(4):
        for ds in range(4):
            b = t + 4 * ds
            for d in range(4):
                src = O(qb, 2 * ds + (d >> 1)) + 2 * (d & 1)
                a(f'v_cvt_pk_bf16_f32 v{b + d}, v{src}, v{src + 1}')
        for ds in range(4):
            b = t + 4 * ds
            a(f'v_permlane32_swap_b32 v{b}, v{b + 2}')
            a(f'v_permlane32_swap_b32 v{b + 1}, v{b + 3}')
        for ds in range(4):
            b = t + 4 * ds
            a(f'v_permlane16_swap_b32 v{b}, v{b + 2}')
            a(f'v_permlane16_swap_b32 v{b + 1}, v{b + 3}')
        for ds in range(4):
            for d in range(4):
                a(f'v_accvgpr_write_b32 a{QF(qb, ds) + d}, v{t + 4 * ds + d}')
        z = ar(A_ZERO, 4)
        for hh in range(2):
            b = O(qb, 4 * hh)
            a(f'v_mfma_f32_32x32x16_bf16 v[{b}:{b + 15}], {z}, {z}, 0')
    for r in range(8):
        a(f'v_mov_b32 v{V_P + r}, 0')
    for r in range(4):
        a(f'v_mov_b32 v{V_L + r}, 0')
    a(f's_mov_b32 s{S_KOFF}, {2 * 16384 + 8192}')


def qk_slots(n):
    u, qb = n // 4, n % 4
    out = []
    for kb in range(2):
        d = vr(V_S + (n & 1) * 8 + kb * 4, 4)
        ch = []
        for ds in range(4):
            ch.append(mfma(d, ar(KF(u & 1, kb, ds), 4), ar(QF(qb, ds), 4), '0' if ds == 0 else d))
        out.append(ch)
    return out


def pv_slots(n):
    u, qb = n // 4, n % 4
    B = vr(V_P + (n & 1) * 4, 4)
    return [mfma(vr(O(qb, db), 4), ar(VF(u & 1, db), 4), B, vr(O(qb, db), 4)) for db in range(8)]


def l_slot(n):
    qb = n % 4
    d = ar(A_L + qb * 4, 4)
    return mfma(d, ar(A_ONE, 4), vr(V_P + (n & 1) * 4, 4), d)


def gen_main(a, cfg):
    lmode = cfg.get('lmode', 'add')
    st = Stream(a)
    a.wait_regs([f'a[{KF(0, 0, 0)}:{KF(0, 0, 0) + 31}]'])
    q = qk_slots(0)
    for m in q[0] + q[1]:
        a(m)
    a.nop(2)
    ts(a, cfg, 2)
    for n in range(256):
        s, qi = n // 4, n % 4
        if n % 32 == 0:
            a.mark(f'grp{n // 32}')
        T = s // 2
        kr = kf_reads(s + 1)
        vrd = vf_reads(s + 1)
        rd = {0: kr[0:6], 1: kr[6:8] + vrd[0:4], 2: vrd[4:10], 3: vrd[10:16]}[qi]
        p = n % 8
        T2 = T + 2
        pre_dma = []
        if p == 0:
            pre_dma = [f's_min_u32 s{S_TMP}, s{S_KOFF}, s{S_MAX}',
                       f's_add_u32 m0, s{S_M0B}, {slot_of(T2) * 16384}']
        elif p == 4:
            pre_dma = [f's_add_u32 m0, s{S_M0B}, {65536 + slot_of(T2) * 16384}']
        dma = k_dma(p, ('K', T2)) if p < 4 else v_dma(p - 4, ('V', T2))
        qk = qk_slots(n + 1)
        pv = pv_slots(n - 1)
        ms = qk[0] + pv[0:4] + qk[1] + pv[4:8]
        gaps = [[] for _ in range(17)]
        E = V_E
        S = V_S + (n & 1) * 8
        P = V_P + (n & 1) * 4
        qb = n % 4
        for j in range(8):
            gaps[2 * j].append(f'v_exp_f32 v{E + j}, v{S + j}')
        if lmode == 'add':
            pos = {0: 1, 1: 1, 2: 5, 3: 5, 4: 9, 5: 9}
            for k, r in enumerate(rd):
                gaps[pos[k]].append(r)
            gaps[13].append(dma)
            for j in range(8):
                gaps[2 * j + 1].append(f'v_add_f32 v{V_L + qb}, v{E + j}, v{V_L + qb}')
            for d in range(4):
                gaps[4 * d + 3].append(f'v_cvt_pk_bf16_f32 v{P + d}, v{E + 2 * d}, v{E + 2 * d + 1}')
        else:
            pl = cfg.get('place', 0)
            if pl == 0:
                pos, dpos = {0: 1, 1: 1, 2: 5, 3: 5, 4: 9, 5: 9}, 13
            elif pl == 1:
                pos, dpos = {0: 1, 1: 3, 2: 5, 3: 7, 4: 9, 5: 11}, 13
            elif pl == 2:
                pos, dpos = {0: 1, 1: 3, 2: 5, 3: 9, 4: 11, 5: 13}, 16
            else:
                pos, dpos = {0: 1, 1: 5, 2: 16, 3: 16, 4: 9, 5: 13}, 7
            for k, r in enumerate(rd):
                gaps[pos[k]].append(r)
            gaps[dpos].append(dma)
            for d in range(4):
                gaps[4 * d + 3].append(f'v_cvt_pk_bf16_f32 v{P + d}, v{E + 2 * d}, v{E + 2 * d + 1}')
        if p == 0:
            gaps[0] = [lambda T=T: a.wait_tag_vm(lambda t: t in (('K', T), ('V', T))), 's_barrier'] + gaps[0]
        if pre_dma:
            early = lmode != 'add' and cfg.get('place', 0) >= 2
            g1, g2 = (2, 4) if early else (10, 12)
            gaps[g1] = [pre_dma[0]] + gaps[g1]
            if len(pre_dma) > 1:
                gaps[g2] = [pre_dma[1]] + gaps[g2]
        if p == 7:
            gaps[14] = [f's_add_u32 s{S_KOFF}, s{S_KOFF}, 16384'] + gaps[14]
        slots = [(ms[k], gaps[k]) for k in range(16)]
        if lmode != 'add':
            slots.insert(8, (l_slot(n - 1), gaps[16]))
        if qi == 3:
            a.wait_regs([f'a[{KF((s + 1) & 1, 0, 0)}:{KF((s + 1) & 1, 0, 0) + 31}]'])
        if qi == 1:
            m0_, g0_ = slots[3]
            slots[3] = (m0_, list(g0_) + [lambda s=s: a.wait_regs([f'a[{VF(s & 1, 0)}:{VF(s & 1, 0) + 31}]'])])
        st.run(slots)
    a.mark('grpend')
    a.nop(2)
    for m in pv_slots(255):
        a(m)
    if lmode != 'add':
        a(l_slot(255))


def gen_epilogue(a, cfg):
    lmode = cfg.get('lmode', 'add')
    t = V_X
    a.wait_all()
    a.nop(8)
    for qb in range(4):
        if lmode == 'add':
            sum_over_g(a, V_L + qb, t)
        else:
            a(f'v_accvgpr_read_b32 v{V_L + qb}, a{A_L + qb * 4}')
    a(f'v_min_f32 v{t}, v{V_L}, v{V_L + 1}')
    a(f'v_min_f32 v{t + 1}, v{V_L + 2}, v{V_L + 3}')
    a(f'v_min_f32 v{t}, v{t}, v{t + 1}')
    a(f'v_max_f32 v{t + 1}, v{V_L}, v{V_L + 1}')
    a(f'v_max3_f32 v{t + 1}, v{V_L + 2}, v{V_L + 3}, v{t + 1}')
    for qb in range(4):
        a(f'v_rcp_f32 v{V_L + qb}, v{V_L + qb}')
    a(f'v_and_b32 v{t + 2}, 63, v{V_TID}')
    a(f'v_lshlrev_b32 v{t + 2}, 4, v{t + 2}')
    a(f's_lshl_b32 s3, s{S_QBLK}, 4')
    a(f's_lshl_b32 s{S_TMP}, s{S_WAVE}, 2')
    a(f's_add_u32 s3, s3, s{S_TMP}')
    a('s_lshl_b32 s3, s3, 17')
    a(f's_lshl_b32 s{S_TMP}, s{S_HEAD}, 12')
    a(f's_add_u32 s3, s3, s{S_TMP}')
    ts(a, cfg, 3)
    for qb in range(4):
        a(f's_add_u32 s{S_T1}, s3, {qb * 131072}')
        for m in range(4):
            b = O(qb, 2 * m)
            dst = t + 4 + (m & 1) * 4
            for e in range(8):
                a(f'v_mul_f32 v{b + e}, v{b + e}, v{V_L + qb}')
            for d in range(4):
                a(f'v_cvt_pk_bf16_f32 v{dst + d}, v{b + 2 * d}, v{b + 2 * d + 1}')
            a(f'buffer_store_dwordx4 v[{dst}:{dst + 3}], v{t + 2}, s[{S_O}:{S_O + 3}], s{S_T1} offen offset:{1024 * m}' + STORE_SC)


def gen_ts_store(a, cfg, n):
    if not cfg.get('ts'):
        return
    a.wait_all()
    ts(a, cfg, n - 1)
    load_ptr(a, 4, KA_WS)
    a('s_waitcnt lgkmcnt(0)')
    make_srd(a, 8, 4, WS_TS, 1 << 20)
    a(f's_lshl_b32 s3, s2, 2')
    a(f's_add_u32 s3, s3, s{S_WAVE}')
    a(f's_lshl_b32 s3, s3, 6')
    a('v_mov_b32 v1, s3')
    for i in range(n):
        a(f'v_mov_b32 v2, s{S_TS + 4 * i}')
        a(f'v_mov_b32 v3, s{S_TS + 4 * i + 2}')
        a(f'buffer_store_dwordx2 v[2:3], v1, s[8:11], 0 offen offset:{8 * i}')
        a.nop(2)


def gen_attn(cfg, name='attn_kernel'):
    a = Asm()
    if cfg.get('ts'):
        a(f's_memtime s[{S_TS}:{S_TS + 1}]')
        a(f's_memrealtime s[{S_TS + 2}:{S_TS + 3}]')
    gen_setup(a, cfg)
    gen_qproj(a, cfg)
    gen_p2(a, cfg)
    gen_main(a, cfg)
    gen_epilogue(a, cfg)
    gen_ts_store(a, cfg, 5)
    a.label('L_attn_done')
    a('s_endpgm')
    errs = a.check()
    assert not errs, 'hazards in attn'
    lines = a.text().split('\n')
    lines, info1 = fold_loops(lines, 'qp', f's{S_CNT}', 'L_attn_qp')
    lines, info2 = fold_loops(lines, 'grp', f's{S_CNT}', 'L_attn_main')
    print('attn folds (start,count,groups):', info1, info2, 'waits', a.nwaits)
    return kernel_header(name) + '\n'.join(lines), kernel_desc(name, 512, 256)
```

```python
from common import *
import k_attn as A
import k_tail2 as TL
from k_prep import magic_div

LDS_BYTES = 163840
S_WAVE = 32
S_WS = 90
S_SYNC = 92
V_TID = 249
PREP_LDS = 137216
RL_STAGE = 139264
NSTAMP = 12


STAMPS = []


def stamp(a, cfg, name):
    if cfg.get('ts') and name in cfg['ts']:
        if name not in STAMPS:
            STAMPS.append(name)
        i = STAMPS.index(name)
        assert i < NSTAMP
        a('s_memtime s[88:89]')
        a('s_waitcnt lgkmcnt(0)')
        a(f's_mov_b32 s{64 + 2 * i}, s88')
        a('s_memrealtime s[88:89]')
        a('s_waitcnt lgkmcnt(0)')
        a(f's_mov_b32 s{65 + 2 * i}, s88')


def stamp_store(a, cfg):
    if not cfg.get('ts'):
        return
    a.wait_all()
    make_srd(a, 8, S_WS, WS_TS, 1 << 20)
    a('s_lshl_b32 s3, s2, 2')
    a(f's_add_u32 s3, s3, s{S_WAVE}')
    a('s_lshl_b32 s3, s3, 7')
    a('v_mov_b32 v1, s3')
    for i in range(NSTAMP):
        a(f'v_mov_b32 v2, s{64 + 2 * i}')
        a(f'v_mov_b32 v3, s{65 + 2 * i}')
        a(f'buffer_store_dwordx2 v[2:3], v1, s[8:11], 0 offen offset:{8 * i}')
        a.nop(2)


def sc(cfg):
    return ' sc1' if cfg.get('sc1_loads', 0) else ''


ST = ' sc1'


def arrive(a, k, after=None):
    if after is None:
        a('s_waitcnt vmcnt(0) lgkmcnt(0)')
    else:
        a('s_waitcnt lgkmcnt(0)')
        a('s_barrier')
        n0 = len(a.vmq)
        after()
        newer = a.vmq[n0:]
        a(f's_waitcnt vmcnt({len(newer)})')
    a('s_barrier')
    a(f's_cmp_lg_u32 s{S_WAVE}, 0')
    a(f's_cbranch_scc1 L_arr{k}')
    a('s_and_b32 s3, s2, 7')
    a('s_lshl_b32 s3, s3, 7')
    a(f's_add_u32 s3, s3, {k * 1024}')
    a('s_mov_b64 exec, 1')
    a('v_mov_b32 v254, s3')
    a('v_mov_b32 v255, 1')
    a(f'buffer_atomic_add v255, v254, s[{S_SYNC}:{S_SYNC + 3}], 0 offen sc1')
    a('s_mov_b64 exec, -1')
    a.label(f'L_arr{k}')
    a.vmq, a.lgq = (newer if after is not None else []), []


def wait_bar(a, k, drain=True):
    saved = list(a.vmq)
    a(f's_cmp_lg_u32 s{S_WAVE}, 0')
    a(f's_cbranch_scc1 L_pw{k}')
    a(f'v_and_b32 v254, 7, v{V_TID}')
    a('v_lshlrev_b32 v254, 7, v254')
    a('s_mov_b32 s3, 0')
    a.label(f'L_poll{k}')
    a(f'buffer_load_dword v255, v254, s[{S_SYNC}:{S_SYNC + 3}], 0 offen offset:{k * 1024} sc1')
    a('s_waitcnt vmcnt(0)')
    a('v_cmp_gt_u32 vcc, 32, v255')
    a('s_add_u32 s3, s3, 1')
    a('s_cmp_gt_u32 s3, 400000')
    a(f's_cbranch_scc1 L_pw{k}')
    a('s_cmp_eq_u64 vcc, 0')
    a(f's_cbranch_scc0 L_poll{k}')
    a.label(f'L_pw{k}')
    if drain:
        a('s_waitcnt vmcnt(0) lgkmcnt(0)')
        a('s_barrier')
        a.vmq, a.lgq = [], []
    else:
        a.vmq = saved
        a('s_barrier')


def role_ln(a, cfg):
    load_ptr(a, 4, KA_X)
    a('s_waitcnt lgkmcnt(0)')
    make_srd(a, 56, 4, 0, 2048 * 1280)
    a('v_and_b32 v1, 15, v0')
    a('v_bfe_u32 v2, v0, 4, 2')
    a('v_lshrrev_b32 v3, 6, v0')
    a('s_lshl_b32 s3, s2, 4')
    a('v_add_u32 v4, s3, v1')
    a('s_movk_i32 s3, 1280')
    a('v_mul_lo_u32 v4, v4, s3')
    a('v_mul_u32_u24 v5, 320, v3')
    a('v_lshlrev_b32 v6, 3, v2')
    a('v_add3_u32 v4, v4, v5, v6')
    for t in range(5):
        for h in range(2):
            a(f'buffer_load_dwordx2 v[{20 + 4 * t + 2 * h}:{21 + 4 * t + 2 * h}], v4, s[56:59], 0 offen offset:{64 * t + 32 * h}')
    stamp(a, cfg, 'r_ld')
    a.wait_regs(['v[20:39]'])
    stamp(a, cfg, 'r_dat')
    make_srd(a, 56, S_WS, WS_XN, SZ_XN)
    for d in range(20):
        a(f'v_lshlrev_b32 v{40 + 2 * d}, 16, v{20 + d}')
        a(f'v_and_b32 v{41 + 2 * d}, 0xffff0000, v{20 + d}')
    a('v_lshlrev_b32 v7, 6, v3')
    a('v_lshl_add_u32 v7, v1, 2, v7')
    a(f'v_add_u32 v7, {PREP_LDS}, v7')
    a('v_lshlrev_b32 v8, 2, v1')
    a(f'v_add_u32 v8, {PREP_LDS}, v8')

    def reduce_round(acc, off):
        sum_over_g(a, acc, 11)
        a(f'ds_write_b32 v7, v{acc} offset:{off}')
        a('s_waitcnt lgkmcnt(0)')
        a('s_barrier')
        for wv in range(4):
            a(f'ds_read_b32 v{12 + wv}, v8 offset:{off + 64 * wv}')
        a('v_add_f32 v12, v12, v13')
        a('v_add_f32 v14, v14, v15')
        a(f'v_add_f32 v{acc}, v12, v14')

    a('v_add_f32 v10, v40, v41')
    a('v_add_f32 v9, v42, v43')
    for e in range(4, 40, 2):
        a(f'v_add_f32 v10, v10, v{40 + e}')
        a(f'v_add_f32 v9, v9, v{41 + e}')
    a('v_add_f32 v10, v10, v9')
    reduce_round(10, 0)
    a(f'v_mul_f32 v10, {fhex(1.0 / 640)}, v10')
    for e in range(40):
        a(f'v_sub_f32 v{40 + e}, v{40 + e}, v10')
    a('v_mul_f32 v10, v40, v40')
    a('v_mul_f32 v9, v41, v41')
    for e in range(2, 40, 2):
        a(f'v_fmac_f32 v10, v{40 + e}, v{40 + e}')
        a(f'v_fmac_f32 v9, v{41 + e}, v{41 + e}')
    a('v_add_f32 v10, v10, v9')
    reduce_round(10, 256)
    a(f'v_mov_b32 v9, {fhex(1e-5)}')
    a(f'v_fmac_f32 v9, {fhex(1.0 / 640)}, v10')
    a('v_rsq_f32 v9, v9')
    a.nop(1)
    a(f'v_mul_f32 v9, {fhex(QSCALE)}, v9')
    for e in range(40):
        a(f'v_mul_f32 v{40 + e}, v{40 + e}, v9')
    for d in range(20):
        a(f'v_cvt_pk_f16_f32 v{20 + d}, v{40 + 2 * d}, v{41 + 2 * d}')
    a('v_and_b32 v4, 63, v0')
    a('v_lshlrev_b32 v4, 4, v4')
    a('v_mul_u32_u24 v5, 5120, v3')
    a('v_add_u32 v4, v4, v5')
    a('v_add_u32 v6, 4096, v4')
    a('s_mul_i32 s3, s2, 20480')
    for t in range(4):
        a(f'buffer_store_dwordx4 v[{20 + 4 * t}:{23 + 4 * t}], v4, s[56:59], s3 offen offset:{1024 * t}{ST}')
    a(f'buffer_store_dwordx4 v[36:39], v6, s[56:59], s3 offen{ST}')


def role_gemv(a, cfg):
    load_ptr(a, 4, KA_C)
    load_ptr(a, 6, KA_WMOD)
    a('s_waitcnt lgkmcnt(0)')
    make_srd(a, 56, 4, 0, 1280)
    make_srd(a, 52, 6, 0, 640 * 7680)
    a('s_sub_u32 s3, s2, 128')
    a('s_and_b32 s44, s3, 7')
    a('s_mul_i32 s44, s44, 15')
    a('s_lshr_b32 s3, s3, 3')
    a('s_add_u32 s44, s44, s3')
    a('v_lshrrev_b32 v1, 2, v0')
    a('v_and_b32 v2, 3, v0')
    a('v_lshlrev_b32 v3, 1, v1')
    for p in range(10):
        a(f'buffer_load_ushort v{10 + p}, v3, s[56:59], 0 offen offset:{128 * p}')
    a('s_movk_i32 s3, 7680')
    a('v_mul_lo_u32 v4, v1, s3')
    a('v_lshl_add_u32 v4, v2, 4, v4')
    a('s_lshl_b32 s3, s44, 6')
    a('v_add_u32 v4, s3, v4')
    for p in range(10):
        a(f's_mov_b32 s3, {p * 64 * 7680}')
        a(f'buffer_load_dwordx4 v[{24 + 4 * p}:{27 + 4 * p}], v4, s[52:55], s3 offen')
    stamp(a, cfg, 'r_ld')
    a.wait_regs(['v[10:63]'])
    stamp(a, cfg, 'r_dat')
    make_srd(a, 56, S_WS, WS_MOD, SZ_MOD)
    for p in range(10):
        r = 10 + p
        a(f'v_lshlrev_b32 v{r}, 16, v{r}')
        a(f'v_mul_f32 v21, {fhex(-LOG2E)}, v{r}')
        a('v_exp_f32 v21, v21')
        a.nop(1)
        a('v_add_f32 v21, 1.0, v21')
        a('v_rcp_f32 v21, v21')
        a.nop(1)
        a(f'v_mul_f32 v21, v{r}, v21')
        a('v_cvt_pk_bf16_f32 v21, v21, v21')
        a(f'v_lshlrev_b32 v{r}, 16, v21')
    for p in range(10):
        for d in range(4):
            src = 24 + 4 * p + d
            a(f'v_lshlrev_b32 v21, 16, v{src}')
            a(f'v_and_b32 v22, 0xffff0000, v{src}')
            if p == 0:
                a(f'v_mul_f32 v{70 + 2 * d}, v21, v10')
                a(f'v_mul_f32 v{71 + 2 * d}, v22, v10')
            else:
                a(f'v_fmac_f32 v{70 + 2 * d}, v21, v{10 + p}')
                a(f'v_fmac_f32 v{71 + 2 * d}, v22, v{10 + p}')
    for rot in (8, 4):
        for e in range(8):
            a(f'v_add_f32_dpp v{70 + e}, v{70 + e}, v{70 + e} row_ror:{rot} row_mask:0xf bank_mask:0xf')
        a.nop(1)
    for e in range(8):
        sum_over_g(a, 70 + e, 21)
    a('v_lshrrev_b32 v6, 6, v0')
    a('v_lshlrev_b32 v6, 7, v6')
    a('v_lshl_add_u32 v6, v2, 5, v6')
    a(f'v_add_u32 v6, {PREP_LDS}, v6')
    a('s_mov_b64 exec, 15')
    a('ds_write_b128 v6, v[70:73]')
    a('ds_write_b128 v6, v[74:77] offset:16')
    a('s_mov_b64 exec, -1')
    a('s_waitcnt lgkmcnt(0)')
    a('s_barrier')
    a('v_and_b32 v6, 31, v0')
    a('v_lshlrev_b32 v6, 2, v6')
    a(f'v_add_u32 v7, {PREP_LDS}, v6')
    for wv in range(4):
        a(f'ds_read_b32 v{50 + wv}, v7 offset:{128 * wv}')
    a('v_add_f32 v50, v50, v51')
    a('v_add_f32 v52, v52, v53')
    a('v_add_f32 v50, v50, v52')
    a('v_cvt_pk_bf16_f32 v50, v50, v50')
    a('v_lshlrev_b32 v50, 16, v50')
    a('s_lshl_b32 s3, s44, 7')
    a('v_cmp_gt_u32 vcc, 32, v0')
    a('s_and_saveexec_b64 s[46:47], vcc')
    a(f'buffer_store_dword v50, v6, s[56:59], s3 offen{ST}')
    a('s_mov_b64 exec, s[46:47]')


def role_init(a, cfg):
    stamp(a, cfg, 'r_ld')
    stamp(a, cfg, 'r_dat')
    a('s_cmp_lg_u32 s2, 255')
    a('s_cbranch_scc1 L_noinit')
    a('v_lshlrev_b32 v1, 4, v0')
    for r in range(4):
        a(f'v_mov_b32 v{4 + r}, 0')
    a(f'buffer_store_dwordx4 v[4:7], v1, s[{S_SYNC}:{S_SYNC + 3}], 0 offen{ST}')
    a('s_waitcnt vmcnt(0)')
    a('s_barrier')
    a('v_mov_b32 v1, 0')
    a('v_mov_b32 v2, 1')
    a('s_mov_b64 exec, 1')
    a(f'buffer_store_dword v2, v1, s[56:59], 0 offen{ST}')
    a('s_mov_b64 exec, -1')
    a.label('L_noinit')


def wait_init(a):
    a(f's_cmp_lg_u32 s{S_WAVE}, 0')
    a('s_cbranch_scc1 L_wi_done')
    load_ptr(a, 4, KA_DBG)
    a('s_waitcnt lgkmcnt(0)')
    make_srd(a, 56, 4, 0, 256)
    a('v_mov_b32 v254, 0')
    a('s_mov_b32 s3, 0')
    a.label('L_wi_poll')
    a('buffer_load_dword v255, v254, s[56:59], 0 offen sc1')
    a('s_waitcnt vmcnt(0)')
    a('v_cmp_ne_u32 vcc, 1, v255')
    a('s_add_u32 s3, s3, 1')
    a('s_cmp_gt_u32 s3, 400000')
    a('s_cbranch_scc1 L_wi_done')
    a('s_cmp_eq_u64 vcc, 0')
    a('s_cbranch_scc0 L_wi_poll')
    a.label('L_wi_done')


def attn_prefetch(a, cfg):
    load_ptr(a, 4, KA_K)
    load_ptr(a, 6, KA_V)
    load_ptr(a, 40, KA_WQ)
    a('s_and_b32 s3, s2, 7')
    a('s_lshl_b32 s3, s3, 2')
    a(f's_bfe_u32 s{A.S_HEAD}, s2, 0x20003')
    a(f's_add_u32 s{A.S_HEAD}, s{A.S_HEAD}, s3')
    a(f's_lshr_b32 s{A.S_QBLK}, s2, 5')
    a(f's_lshl_b32 s{A.S_M0B}, s{S_WAVE}, 12')
    g, i, r16, t = 200, 201, 202, 203
    a(f'v_bfe_u32 v{g}, v{V_TID}, 4, 2')
    a(f'v_and_b32 v{i}, 15, v{V_TID}')
    a(f's_lshl_b32 s3, s{S_WAVE}, 4')
    a(f'v_add_u32 v{r16}, s3, v{g}')
    for j in range(4):
        a(f'v_add_u32 v{t}, {4 * j}, v{g}')
        a(f'v_xor_b32 v{t}, v{t}, v{i}')
        a(f'v_lshlrev_b32 v{t}, 4, v{t}')
        a(f'v_lshl_add_u32 v{A.V_KD + j}, v{r16}, 8, v{t}')
    for j in range(2):
        a(f'v_add_u32 v{t}, {4 * j}, v{g}')
        a(f'v_lshlrev_b32 v{t}, 1, v{t}')
        a(f'v_xor_b32 v{t}, v{t}, v{i}')
        a(f'v_lshlrev_b32 v{t}, 4, v{t}')
        a(f'v_lshl_add_u32 v{A.V_VD + j}, v{r16}, 8, v{t}')
        a(f'v_lshl_add_u32 v{A.V_WD + j}, v{r16}, 13, v{t}')
    a('s_waitcnt lgkmcnt(0)')
    a(f's_lshl_b32 s3, s{A.S_HEAD}, 19')
    make_srd(a, A.S_K, 4, 0, 524288, 's3')
    make_srd(a, A.S_V, 6, 0, 524288, 's3')
    a(f's_lshl_b32 s3, s{A.S_HEAD}, 8')
    a(f's_sub_u32 s{A.S_TMP}, {640 * 8192}, s3')
    make_srd(a, A.S_W, 40, 0, f's{A.S_TMP}', 's3')
    A.item_dma_now(a, 0)
    A.item_dma_now(a, 1)
    if cfg.get('touch', 1):
        a(f's_mul_i32 s3, s{A.S_QBLK}, 160')
        a(f'v_add_u32 v{t}, s3, v{V_TID}')
        a(f'v_min_u32 v{t}, 1279, v{t}')
        a(f'v_and_b32 v208, 1, v{t}')
        a(f'v_lshrrev_b32 v{t}, 1, v{t}')
        a(f'v_lshlrev_b32 v{t}, 13, v{t}')
        a(f'v_lshl_add_u32 v{t}, v208, 7, v{t}')
        a(f'buffer_load_dword v209, v{t}, s[{A.S_W}:{A.S_W + 3}], 0 offen')
    if cfg.get('touch_kv', 0):
        a(f's_lshr_b32 s3, s{S_WAVE}, 1')
        a('s_lshl_b32 s3, s3, 9')
        a(f's_lshl_b32 s{A.S_TMP}, s{A.S_QBLK}, 6')
        a(f's_add_u32 s3, s3, s{A.S_TMP}')
        a(f'v_and_b32 v{t}, 63, v{V_TID}')
        a(f'v_add_u32 v{t}, s3, v{t}')
        a(f'v_lshlrev_b32 v{t}, 7, v{t}')
        a(f's_bitcmp1_b32 s{S_WAVE}, 0')
        a(f's_cselect_b32 s40, s{A.S_V}, s{A.S_K}')
        a(f's_cselect_b32 s41, s{A.S_V + 1}, s{A.S_K + 1}')
        a('s_mov_b32 s42, 524288')
        a('s_mov_b32 s43, 0x20000')
        a(f'buffer_load_dword v210, v{t}, s[40:43], 0 offen')
    a(f's_cmp_ge_u32 s{S_WAVE}, 2')
    a(f's_cselect_b32 s{A.S_ADJ}, 8192, 0')
    a(f's_sub_u32 s{A.S_MAX}, {524288 - 4096}, s{A.S_M0B}')
    a(f's_mov_b32 m0, s{A.S_M0B}')
    for j in range(4):
        a(f'v_subrev_u32 v{204 + j}, s{A.S_ADJ}, v{A.V_KD + j}')
    for j in range(4):
        a(f'buffer_load_dwordx4 v{204 + j}, s[{A.S_K}:{A.S_K + 3}], 0 offen offset:{1024 * j} lds', tag=('K', -1))
    a(f's_add_u32 m0, s{A.S_M0B}, {16384 * A.slot_of(0)}')
    a(f's_movk_i32 s{A.S_TMP}, 8192')
    for j in range(4):
        a(*A.k_dma(j, ('K', 0)))


RL_SRD = 56
RL_DOFF = 96


def rl_issue(a, which, vt=220):
    R = RL_SRD
    M = 128 if which == 'wo' else 54
    load_ptr(a, 4, KA_WO if which == 'wo' else KA_W2)
    if which == 'wo':
        a('s_lshl_b32 s42, s2, 2')
        a(f's_add_u32 s42, s42, s{S_WAVE}')
    else:
        a('s_mul_i32 s42, s2, 3')
        a(f's_add_u32 s42, s42, s{S_WAVE}')
        a('s_sub_u32 s42, s42, 1')
    a('s_lshr_b32 s43, s42, 3')
    a('s_and_b32 s42, s42, 7')
    a('s_mul_i32 s41, s43, 40960')
    a('s_mul_i32 s60, s42, 160')
    a('s_add_u32 s41, s41, s60')
    a('s_mul_i32 s60, s42, 5')
    a(f's_mul_i32 s60, s60, {M}')
    a('s_add_u32 s60, s60, s43')
    a(f's_lshl_b32 s{RL_DOFF}, s60, 10')
    a(f's_mul_i32 s61, s{S_WAVE}, 5120')
    a(f'v_and_b32 v{vt}, 63, v{V_TID}')
    a('s_waitcnt lgkmcnt(0)')
    make_srd(a, R, 4, 0, (4096 if which == 'wo' else 1728) * 1280)
    for j in range(5):
        if j:
            a(f'v_add_u32 v{vt}, 64, v{vt}')
        a(f'v_mul_u32_u24 v{vt + 1}, 6554, v{vt}')
        a(f'v_lshrrev_b32 v{vt + 1}, 16, v{vt + 1}')
        a(f'v_mul_u32_u24 v{vt + 2}, 10, v{vt + 1}')
        a(f'v_sub_u32 v{vt + 2}, v{vt}, v{vt + 2}')
        a(f'v_mul_u32_u24 v{vt + 1}, 1280, v{vt + 1}')
        a(f'v_lshl_add_u32 v{vt + 1}, v{vt + 2}, 4, v{vt + 1}')
        a(f's_add_u32 m0, s61, {RL_STAGE + 1024 * j}')
        a.nop(1)
        a(f'buffer_load_dwordx4 v{vt + 1}, s[{R}:{R + 3}], s41 offen lds', tag='rl')


def rl_finish(a, which, AB, vt=220):
    R = RL_SRD
    M = 128 if which == 'wo' else 54
    if which == 'wo':
        make_srd(a, R, S_WS, WS_WOF, SZ_WOF)
    else:
        make_srd(a, R, S_WS, WS_W2F, SZ_W2F)
    a(f'v_and_b32 v{vt + 1}, 63, v{V_TID}')
    a(f'v_lshlrev_b32 v{vt}, 4, v{vt + 1}')
    a(f'v_lshrrev_b32 v{vt + 2}, 4, v{vt + 1}')
    a(f'v_bfe_u32 v{vt + 3}, v{vt + 1}, 2, 2')
    a(f'v_lshl_add_u32 v{vt + 2}, v{vt + 2}, 2, v{vt + 3}')
    a(f'v_mul_u32_u24 v{vt + 2}, 160, v{vt + 2}')
    a(f'v_and_b32 v{vt + 3}, 3, v{vt + 1}')
    a(f'v_lshl_add_u32 v{vt + 2}, v{vt + 3}, 3, v{vt + 2}')
    a(f's_mul_i32 s3, s{S_WAVE}, 5120')
    a(f's_add_u32 s3, s3, {RL_STAGE}')
    a(f'v_add_u32 v{vt + 2}, s3, v{vt + 2}')
    for c in range(5):
        for sel in range(2):
            b = AB + 4 * c + 2 * sel
            a(f'ds_read_b64_tr_b16 a[{b}:{b + 1}], v{vt + 2} offset:{32 * c + 2560 * sel}')
    a(f's_mov_b32 s3, s{RL_DOFF}')
    for c in range(5):
        b = AB + 4 * c
        a(f'buffer_store_dwordx4 a[{b}:{b + 3}], v{vt}, s[{R}:{R + 3}], s3 offen{ST}')
        if c < 4:
            a(f's_add_u32 s3, s3, {M * 1024}')


def w2_job(a):
    saved = (list(a.vmq), list(a.lgq))
    a(f's_cmp_eq_u32 s{S_WAVE}, 0')
    a('s_cbranch_scc1 L_w2_skip')
    a('s_cmp_ge_u32 s2, 144')
    a('s_cbranch_scc1 L_w2_skip')
    a.vmq, a.lgq = [], []
    rl_issue(a, 'w2')
    a('s_waitcnt vmcnt(0)')
    rl_finish(a, 'w2', 0)
    a.label('L_w2_skip')
    a.vmq, a.lgq = saved


def side_jobs(cfg):
    a = Asm()
    a.label('L_side0')
    rl_issue(a, 'wo')
    a('s_branch L_side_ret')
    errs = a.check()
    assert not errs
    return a.text().split('\n')


def attn_setup2(a, cfg):
    make_srd(a, A.S_X, S_WS, WS_XN, SZ_XN)
    make_srd(a, A.S_O, S_WS, WS_O, SZ_O)
    make_srd(a, A.S_M, S_WS, WS_MOD, SZ_MOD)
    T = A.V_TMP
    tid = V_TID
    a(f'v_lshlrev_b32 v{T}, 4, v{tid}')
    a(f'buffer_load_dwordx4 v[0:3], v{T}, s[{A.S_M}:{A.S_M + 3}], 0 offen{sc(cfg)}', tag='mod')
    a(f'buffer_load_dwordx4 v[4:7], v{T}, s[{A.S_M}:{A.S_M + 3}], 0 offen offset:2560{sc(cfg)}', tag='mod')
    a(f'v_and_b32 v8, 63, v{tid}')
    a('v_lshrrev_b32 v9, 4, v8')
    a('v_and_b32 v10, 15, v8')
    a(f's_lshl_b32 s3, s{A.S_QBLK}, 4')
    a(f's_lshl_b32 s{A.S_TMP}, s{S_WAVE}, 2')
    a(f's_add_u32 s3, s3, s{A.S_TMP}')
    a('s_mul_i32 s3, s3, 20480')
    a('v_lshlrev_b32 v12, 4, v8')
    a(f'v_add_u32 v{A.V_XA}, s3, v12')
    for qb in range(4):
        a(f's_mov_b32 s{A.S_XOFF + qb}, {qb * 20480}')


def attn_setup3(a, cfg):
    for U in range(16):
        a(A.xn_load(U), tag=('xn', U))
    for qb in range(4):
        a(f's_add_u32 s{A.S_XOFF + qb}, s{A.S_XOFF + qb}, 4096')
    tid = V_TID
    a('v_lshrrev_b32 v12, 2, v10')
    a('v_lshl_add_u32 v12, v9, 2, v12')
    a('v_and_b32 v13, 7, v12')
    a('v_lshlrev_b32 v12, 8, v12')
    a('v_and_b32 v14, 3, v10')
    a('v_lshl_add_u32 v12, v14, 3, v12')
    a('v_add_u32 v12, 98304, v12')
    for db in range(8):
        a(f'v_xor_b32 v14, {db}, v13')
        a(f'v_lshl_add_u32 v{A.V_WA + db}, v14, 5, v12')
    a(f'v_lshlrev_b32 v{A.V_SBA}, 4, v9')
    a(f'v_add_u32 v{A.V_SBA}, {A.SB_OFF}, v{A.V_SBA}')
    for e in range(4):
        a(f'v_add_f32 v{4 + e}, 1.0, v{4 + e}')
    a('v_cvt_pk_bf16_f32 v12, v4, v5')
    a('v_cvt_pk_bf16_f32 v13, v6, v7')
    a('v_lshlrev_b32 v4, 16, v12')
    a('v_and_b32 v5, 0xffff0000, v12')
    a('v_lshlrev_b32 v6, 16, v13')
    a('v_and_b32 v7, 0xffff0000, v13')
    for e in range(4):
        a(f'v_mul_f32 v{e}, {fhex(QSCALE)}, v{e}')
    a(f'v_lshlrev_b32 v12, 4, v{tid}')
    a(f'v_add_u32 v12, {A.SB_OFF}, v12')
    a(f'v_cmp_gt_u32 vcc, 160, v{tid}')
    a('s_and_saveexec_b64 s[54:55], vcc')
    a('ds_write_b128 v12, v[4:7]')
    a('ds_write_b128 v12, v[0:3] offset:2560')
    a('s_mov_b64 exec, s[54:55]')
    for r in range(128):
        a(f'v_mov_b32 v{r}, 0')
    a(f's_add_u32 s{A.S_M0A}, s{A.S_M0B}, {65536 + 16384}')
    a(f's_add_u32 s{A.S_M0C}, s{A.S_M0B}, {65536 + 32768}')
    a(f's_mov_b32 s{A.S_WITEM}, {3 * 524288}')


def attn_consts(a):
    for r in range(32):
        a(f'v_accvgpr_write_b32 a{A.VF(1, 0) + r}, 0')
    for r in range(4):
        a(f'v_accvgpr_write_b32 a{A.A_ZERO + r}, 0')
    a('v_mov_b32 v12, 0x3f803f80')
    for r in range(4):
        a(f'v_accvgpr_write_b32 a{A.A_ONE + r}, v12')
    for r in range(16):
        a(f'v_accvgpr_write_b32 a{A.A_L + r}, 0')


def gen_fused(cfg, name):
    del STAMPS[:]
    cfa = dict(cfg)
    cfa.pop('ts', None)
    A.LOAD_SC = sc(cfg)
    A.STORE_SC = ST
    TL.LOAD_SC = sc(cfg)
    TL.STORE_SC = ST
    a = Asm()
    a('s_cmp_ge_u32 s2, 256')
    a('s_cbranch_scc1 L_done')
    load_ptr(a, S_WS, KA_WS)
    load_ptr(a, 6, KA_DBG)
    a(f'v_mov_b32 v{V_TID}, v0')
    a('v_lshrrev_b32 v1, 6, v0')
    a.nop(1)
    a(f'v_readfirstlane_b32 s{S_WAVE}, v1')
    stamp(a, cfg, 'entry')
    a('s_waitcnt lgkmcnt(0)')
    make_srd(a, S_SYNC, S_WS, WS_SYNC, SZ_SYNC)
    make_srd(a, 56, 6, 0, 256)
    a('s_cmp_ge_u32 s2, 248')
    a('s_cbranch_scc1 L_role_init')
    a('s_cmp_ge_u32 s2, 128')
    a('s_cbranch_scc1 L_role_gemv')
    role_ln(a, cfg)
    a('s_branch L_role_done')
    a.label('L_role_gemv')
    a.vmq, a.lgq = [], []
    role_gemv(a, cfg)
    a('s_branch L_role_done')
    a.label('L_role_init')
    a.vmq, a.lgq = [], []
    role_init(a, cfg)
    a.label('L_role_done')
    a.vmq, a.lgq = [], []
    wait_init(a)
    stamp(a, cfg, 'prep')
    arrive(a, 0)
    stamp(a, cfg, 'arr0')
    attn_prefetch(a, cfg)
    stamp(a, cfg, 'r_pf')
    attn_consts(a)
    wait_bar(a, 0, drain=False)
    stamp(a, cfg, 'bar0')
    attn_setup2(a, cfg)
    attn_setup3(a, cfg)
    A.gen_qproj(a, cfa, fused=True, pre_cb=lambda: stamp(a, cfg, 'qp0'))
    stamp(a, cfg, 'qproj')
    A.gen_p2(a, cfa)
    stamp(a, cfg, 'p2')
    A.gen_main(a, cfa)
    stamp(a, cfg, 'main')
    A.gen_epilogue(a, cfa)
    rl_finish(a, 'wo', 216)
    stamp(a, cfg, 'aepi')
    arrive(a, 1)
    stamp(a, cfg, 'arr1')
    TL.splitk_phase(a, cfg, 'oproj', lambda: (w2_job(a), wait_bar(a, 1, drain=False)), lambda i: stamp(a, cfg, i))
    stamp(a, cfg, 'opepi')
    TL.ffn1_setup(a)
    arrive(a, 2)
    stamp(a, cfg, 'arr2')
    TL.ffn1_phase(a, cfg, lambda: wait_bar(a, 2, drain=False), lambda i: stamp(a, cfg, i),
                  lambda: (a('s_waitcnt lgkmcnt(0)'), a('s_barrier'), TL.ffn2_a_dma(a, cfg)))
    stamp(a, cfg, 'f1epi')
    arrive(a, 3)
    stamp(a, cfg, 'arr3')
    TL.splitk_phase(a, cfg, 'ffn2', lambda: wait_bar(a, 3, drain=False), lambda i: stamp(a, cfg, i))
    stamp(a, cfg, 'end')
    stamp_store(a, cfg)
    a.label('L_done')
    a('s_endpgm')
    errs = a.check()
    assert not errs, 'hazards'
    lines = a.text().split('\n')
    lines, i1 = fold_loops(lines, 'qp', f's{A.S_CNT}', 'L_attn_qp')
    lines, i2 = fold_loops(lines, 'grp', f's{A.S_CNT}', 'L_attn_main')
    k = lines.index('    s_cbranch_scc1 L_attn_main')
    assert lines[k - 2].strip().startswith('s_sub_u32') and lines[k - 1].strip().startswith('s_cmp_lg')
    hook = []
    hook += [f'    s_cmp_eq_u32 s{A.S_CNT}, {cfg.get("side_at", 4)}', '    s_cbranch_scc1 L_side0']
    hook += ['L_side_ret:']
    lines[k - 2:k - 2] = hook
    e = lines.index('L_done:')
    lines[e:e] = ['    s_endpgm'] + side_jobs(cfg)
    lines, i3 = fold_loops(lines, 'sk', 's43', 'L_oproj_loop')
    print('folds', i1, i2, i3)
    lines.insert(0, '; STAMPS: ' + ','.join(STAMPS))
    return kernel_header(name) + '\n'.join(lines), kernel_desc(name, 512, 256, nsgpr=102)
```

```python
from common import *

LOAD_SC = ''
STORE_SC = ''
F_TID = 249
F_WS = 90
F_WAVE = 32
F_X2 = 200

S_A, S_B, S_X, S_M, S_O1, S_O3 = 8, 12, 16, 20, 24, 52
S_RT, S_CT, S_KOFF = 33, 34, 35
V_VB, V_VA, V_VB8 = 240, 244, 232
V_EP = 80


def m16(d, a_, b_, c):
    return f'v_mfma_f32_16x16x32_bf16 {d}, {a_}, {b_}, {c}'


def ring_reg(slot, f):
    return slot * 36 + f * 4


def tile_64x80(a):
    a('s_and_b32 s3, s2, 7')
    a('s_lshr_b32 s36, s2, 3')
    a(f's_lshr_b32 s{S_RT}, s3, 1')
    a(f's_lshl_b32 s{S_RT}, s{S_RT}, 3')
    a('s_and_b32 s37, s36, 7')
    a(f's_add_u32 s{S_RT}, s{S_RT}, s37')
    a(f's_and_b32 s{S_CT}, s3, 1')
    a(f's_lshl_b32 s{S_CT}, s{S_CT}, 2')
    a('s_lshr_b32 s37, s36, 3')
    a(f's_add_u32 s{S_CT}, s{S_CT}, s37')


S_W1, S_UV = 44, 48
UV_LDS = 81920


def uv_pre(a):
    make_srd(a, S_W1, F_WS, WS_W1F, SZ_W1F)
    make_srd(a, S_UV, F_WS, WS_UV, SZ_UV)
    a('s_cmp_ge_u32 s2, 108')
    a(f's_cselect_b32 s{S_W1 + 2}, 0, s{S_W1 + 2}')
    a(f's_cselect_b32 s{S_UV + 2}, 0, s{S_UV + 2}')
    a('v_cmp_eq_u32 vcc, 0, v5')
    a(f'v_mov_b32 v10, {1920 * 4}')
    a(f'v_mov_b32 v11, {2560 * 4}')
    a('v_cndmask_b32 v10, v10, v11, vcc')
    a('v_lshl_add_u32 v10, v6, 4, v10')
    a(f's_mul_i32 s39, s{F_WAVE}, {5 * 128}')
    a('v_add_u32 v10, s39, v10')
    a('v_cndmask_b32 v11, 0, 1.0, vcc')
    for t in range(5):
        for hh in range(2):
            r = 140 + 8 * t + 4 * hh
            a(f'buffer_load_dwordx4 v[{r}:{r + 3}], v10, s[{S_M}:{S_M + 3}], 0 offen offset:{128 * t + 64 * hh}{LOAD_SC}')
    for t in range(5):
        r = 140 + 8 * t
        for e in range(8):
            a(f'v_add_f32 v{r + e}, v{r + e}, v11')
        for d in range(4):
            a(f'v_cvt_pk_bf16_f32 v{200 + 4 * t + d}, v{r + 2 * d}, v{r + 2 * d + 1}')


def uv_loads(a):
    a('s_min_u32 s39, s2, 107')
    a('s_mul_i32 s39, s39, 20')
    a(f's_mul_i32 s40, s{F_WAVE}, 5')
    a('s_add_u32 s39, s39, s40')
    a('s_lshl_b32 s39, s39, 10')
    a('s_add_u32 s41, s39, 4096')
    for t in range(5):
        so, imm = ('s39', 1024 * t) if t < 4 else ('s41', 0)
        a(f'buffer_load_dwordx4 v[{140 + 4 * t}:{143 + 4 * t}], v236, s[{S_W1}:{S_W1 + 3}], {so} offen offset:{imm}{LOAD_SC}')


def uv_finish(a):
    for t in range(5):
        a(m16('v[220:223]', vr(140 + 4 * t, 4), vr(200 + 4 * t, 4), '0' if t == 0 else 'v[220:223]'))
    a('v_lshlrev_b32 v224, 6, v239')
    a('v_lshl_add_u32 v224, v238, 4, v224')
    a(f's_lshl_b32 s39, s{F_WAVE}, 7')
    a(f's_add_u32 s39, s39, {UV_LDS}')
    a('v_add_u32 v224, s39, v224')
    a('v_cmp_gt_u32 vcc, 2, v239')
    a.nop(3)
    a('s_and_saveexec_b64 s[40:41], vcc')
    a('ds_write_b128 v224, v[220:223]')
    a('s_mov_b64 exec, s[40:41]')
    a('s_waitcnt lgkmcnt(0)')
    a('s_barrier')
    a(f'v_and_b32 v224, 31, v{F_TID}')
    a('v_lshlrev_b32 v224, 2, v224')
    a(f'v_add_u32 v225, {UV_LDS}, v224')
    for w in range(4):
        a(f'ds_read_b32 v{220 + w}, v225 offset:{128 * w}')
    a(f'v_lshrrev_b32 v225, 4, v{F_TID}')
    a(f'v_mul_u32_u24 v225, {1728 * 4}, v225')
    a(f'v_and_b32 v224, 15, v{F_TID}')
    a('v_lshl_add_u32 v225, v224, 2, v225')
    a('s_min_u32 s39, s2, 107')
    a('s_lshl_b32 s39, s39, 6')
    a('v_add_f32 v220, v220, v221')
    a('v_add_f32 v222, v222, v223')
    a('v_add_f32 v220, v220, v222')
    a(f'v_mul_f32 v220, {fhex(LOG2E)}, v220')
    a(f'v_cmp_gt_u32 vcc, 32, v{F_TID}')
    a('s_and_saveexec_b64 s[40:41], vcc')
    a(f'buffer_store_dword v220, v225, s[{S_UV}:{S_UV + 3}], s39 offen{STORE_SC}')
    a('s_mov_b64 exec, s[40:41]')


def splitk_phase(a, cfg, kind, wait_cb, stamp):
    oproj = kind == 'oproj'
    M = 128 if oproj else 54
    nsteps = 32 if oproj else 14
    L = f'L_{kind}'
    RING = cfg.get('ring_o' if oproj else 'ring_f', 6 if oproj else 6)
    load_ptr(a, 6, KA_X if oproj else KA_OUT)
    tile_64x80(a)
    a('s_waitcnt lgkmcnt(0)')
    if oproj:
        make_srd(a, S_A, F_WS, WS_WOF, SZ_WOF)
        make_srd(a, S_B, F_WS, WS_O, SZ_O)
        make_srd(a, S_X, 6, 0, 2048 * 1280)
        make_srd(a, S_O1, F_WS, WS_Y, SZ_Y)
        make_srd(a, S_O3, F_WS, WS_STATS, SZ_STATS)
    else:
        make_srd(a, S_A, F_WS, WS_W2F, SZ_W2F)
        make_srd(a, S_B, F_WS, WS_H, SZ_H)
        make_srd(a, S_O1, 6, 0, 2048 * 1280)
    make_srd(a, S_M, F_WS, WS_MOD, SZ_MOD)
    a(f's_mul_i32 s38, s{F_WAVE}, {nsteps}')
    a(f'v_and_b32 v2, 63, v{F_TID}')
    a('v_lshlrev_b32 v3, 4, v2')
    a('s_lshl_b32 s39, s38, 10')
    a('v_add_u32 v4, s39, v3')
    if not oproj:
        a('v_lshlrev_b32 v12, 3, v2')
        a('v_add_u32 v12, s39, v12')
    for r in range(4):
        a(f's_add_u32 s40, s{F_WAVE}, {r}')
        a('s_and_b32 s40, s40, 3')
        a(f's_lshl_b32 s39, s{S_RT}, 2')
        a('s_add_u32 s39, s39, s40')
        a(f's_mul_i32 s39, s39, {M * 1024}')
        a(f'v_add_u32 v{V_VB + r}, s39, v4')
        if not oproj:
            a(f'v_add_u32 v{V_VB8 + r}, s39, v12')
    for c in range(5):
        a(f's_mul_i32 s39, s{S_CT}, 5')
        a(f's_add_u32 s39, s39, {c}')
        a(f's_mul_i32 s39, s39, {M * 1024}')
        a(f'v_add_u32 v{V_VA + c}, s39, v4')

    def load(step, f, soff):
        slot = step % RING
        r = ring_reg(slot, f)
        if f >= 4:
            return [(f'buffer_load_dwordx4 a[{r}:{r + 3}], v{V_VA + f - 4}, s[{S_A}:{S_A + 3}], {soff} offen{LOAD_SC}',
                     ('k', step))]
        if (not oproj) and step % 7 == 3:
            return [(f'buffer_load_dwordx2 a[{r + 2 * h}:{r + 2 * h + 1}], v{V_VB8 + f}, s[{S_B}:{S_B + 3}], {soff} offen '
                     f'offset:{512 * h}{LOAD_SC}', ('k', step)) for h in range(2)]
        return [(f'buffer_load_dwordx4 a[{r}:{r + 3}], v{V_VB + f}, s[{S_B}:{S_B + 3}], {soff} offen{LOAD_SC}',
                 ('k', step))]

    early_a = (not oproj)
    if early_a:
        for step in range(RING):
            a(f's_movk_i32 s{S_KOFF}, {step * 1024}')
            for f in range(4, 9):
                for t, tag in load(step, f, f's{S_KOFF}'):
                    a(t, tag=tag)
    i_, g_ = 5, 6
    a(f'v_and_b32 v{i_}, 15, v2')
    a(f'v_lshrrev_b32 v{g_}, 4, v2')
    a(f's_mul_i32 s39, s{S_CT}, 320')
    a(f'v_lshl_add_u32 v7, v{g_}, 4, s39')
    a(f's_lshl_b32 s40, s{S_RT}, 2')
    a(f's_add_u32 s40, s40, s{F_WAVE}')
    a('s_lshl_b32 s41, s40, 4')
    a(f'v_add_u32 v8, s41, v{i_}')
    if oproj:
        a('s_movk_i32 s41, 1280')
        a('v_mul_lo_u32 v9, v8, s41')
        a('v_lshrrev_b32 v10, 1, v7')
        a('v_add_u32 v9, v9, v10')
        for c in range(5):
            a(f'buffer_load_dwordx2 v[{V_EP + 2 * c}:{V_EP + 2 * c + 1}], v9, s[{S_X}:{S_X + 3}], 0 offen offset:{32 * c}')
        a(f's_movk_i32 s41, {1280 * 4}')
        a(f's_movk_i32 s42, {2560 * 4}')
        for c in range(5):
            a(f'buffer_load_dwordx4 v[{V_EP + 12 + 4 * c}:{V_EP + 15 + 4 * c}], v7, s[{S_M}:{S_M + 3}], s41 offen offset:{64 * c}{LOAD_SC}')
        for c in range(5):
            a(f'buffer_load_dwordx4 v[{V_EP + 32 + 4 * c}:{V_EP + 35 + 4 * c}], v7, s[{S_M}:{S_M + 3}], s42 offen offset:{64 * c}{LOAD_SC}')
    else:
        a(f's_movk_i32 s41, {3200 * 4}')
        for c in range(5):
            a(f'buffer_load_dwordx4 v[{V_EP + 20 + 4 * c}:{V_EP + 23 + 4 * c}], v7, s[{S_M}:{S_M + 3}], s41 offen offset:{64 * c}{LOAD_SC}')
    a('v_mov_b32 v236, v3')
    a('v_mov_b32 v237, v8')
    a('v_mov_b32 v238, v6')
    a('v_mov_b32 v239, v5')
    for r in range(80):
        a(f'v_mov_b32 v{r}, 0')
    wait_cb()
    stamp('bar1' if oproj else 'bar3')
    for step in range(RING):
        a(f's_movk_i32 s{S_KOFF}, {step * 1024}')
        for f in (range(4) if early_a else range(9)):
            for t, tag in load(step, f, f's{S_KOFF}'):
                a(t, tag=tag)

    def step_mfma(step):
        slot = step % RING
        out = []
        for c in range(5):
            for r in range(4):
                d = vr((r * 5 + c) * 4, 4)
                out.append(m16(d, ar(ring_reg(slot, 4 + c), 4), ar(ring_reg(slot, r), 4), d))
        return out

    A_LDS_FROM = RING

    def a_lds_reads(step):
        slot = step % RING
        return [f'ds_read_b128 a[{ring_reg(slot, 4 + c)}:{ring_reg(slot, 4 + c) + 3}], v231 '
                f'offset:{((step - A_LDS_FROM) * 5 + c) * 1024}' for c in range(5)]

    if not oproj:
        a(f's_mul_i32 s39, s{F_WAVE}, 40960')
        a('v_add_u32 v231, s39, v236')
    for step in range(nsteps):
        if oproj and step % RING == 0:
            a.mark(f'sk{step // RING}')
        nxt = step + RING
        if (not oproj) and step == 12:
            a(f's_cmp_eq_u32 s{F_WAVE}, 3')
            a(f's_cbranch_scc1 {L}_skip')
        a.wait_tag_vm(lambda t: t == ('k', step))
        ms = step_mfma(step)
        ld = []
        if nxt < nsteps:
            if (not oproj) and nxt >= 12:
                a(f's_cmp_eq_u32 s{F_WAVE}, 3')
                a('s_cselect_b32 s39, 0, 1024')
                a(f's_add_u32 s{S_KOFF}, s{S_KOFF}, s39')
            else:
                a(f's_add_u32 s{S_KOFF}, s{S_KOFF}, 1024')
            if oproj:
                ld = [load(nxt, f, f's{S_KOFF}') for f in range(9)]
            else:
                ld = [load(nxt, f, f's{S_KOFF}') for f in range(4)]
                ld += [[(x, None)] for x in a_lds_reads(nxt)]
        for k, m in enumerate(ms):
            a(m)
            if ld and k % 4 == 3 and k // 4 < 4:
                for t, tag in ld[4 + k // 4]:
                    a(t, tag=tag)
        if ld:
            for f in (8, 0, 1, 2, 3):
                for t, tag in ld[f]:
                    a(t, tag=tag)
        if oproj and step == nsteps - RING:
            ffn1_pre(a)
            ffn1_a_dma(a, (2, 3, 4))
    if not oproj:
        a.label(f'{L}_skip')
        a.wait_all()
        a('s_barrier')
    else:
        a.mark('skend')
    stamp('oploop' if oproj else 'f2loop')
    RED = [0, 20480, 143360 if oproj else 40960]
    a.nop(8)
    a(f's_mul_i32 s39, s{F_WAVE}, 5120')
    a('v_add_u32 v230, s39, v236')
    a(f'v_add_u32 v229, {RED[2]}, v230')
    for rp in range(1, 4):
        for c in range(5):
            b = (rp * 5 + c) * 4
            v, off = (230, RED[rp - 1]) if rp < 3 else (229, 0)
            a(f'ds_write_b128 v{v}, v[{b}:{b + 3}] offset:{off + c * 1024}')
    for rp in range(1, 4):
        a(f's_sub_u32 s39, s{F_WAVE}, {rp}')
        a('s_and_b32 s39, s39, 3')
        a('s_mul_i32 s39, s39, 5120')
        a(f's_add_u32 s39, s39, {RED[rp - 1]}')
        a(f'v_add_u32 v{226 + rp}, s39, v236')
    a('s_waitcnt lgkmcnt(0)')
    a('s_barrier')
    for c in range(5):
        for rp in range(1, 4):
            b = (rp * 5 + c) * 4
            a(f'ds_read_b128 v[{b}:{b + 3}], v{226 + rp} offset:{c * 1024}')
    for c in range(5):
        for e in range(4):
            b = c * 4 + e
            a(f'v_add_f32 v{b}, v{b}, v{b + 20}')
            a(f'v_add_f32 v{b + 40}, v{b + 40}, v{b + 60}')
            a(f'v_add_f32 v{b}, v{b}, v{b + 40}')
    if oproj:
        a('s_barrier')
        a.set_bg(ffn1_a_groups((0, 1)), 6)
    stamp('opred' if oproj else 'f2red')
    if oproj:
        X = F_X2
        for c in range(5):
            x0 = V_EP + 2 * c
            for e in range(4):
                src = x0 + (e >> 1)
                if e & 1:
                    a(f'v_and_b32 v20, 0xffff0000, v{src}')
                else:
                    a(f'v_lshlrev_b32 v20, 16, v{src}')
                a(f'v_fma_f32 v{X + c * 4 + e}, v{V_EP + 12 + 4 * c + e}, v{c * 4 + e}, v20')
        for c in range(5):
            cb = V_EP + 32 + 4 * c
            for e in range(4):
                a(f'v_add_f32 v{cb + e}, 1.0, v{cb + e}')
            a(f'v_cvt_pk_bf16_f32 v20, v{cb}, v{cb + 1}')
            a(f'v_cvt_pk_bf16_f32 v21, v{cb + 2}, v{cb + 3}')
            a(f'v_lshlrev_b32 v{cb}, 16, v20')
            a(f'v_and_b32 v{cb + 1}, 0xffff0000, v20')
            a(f'v_lshlrev_b32 v{cb + 2}, 16, v21')
            a(f'v_and_b32 v{cb + 3}, 0xffff0000, v21')
            for e in range(4):
                a(f'v_mul_f32 v{cb + e}, v{cb + e}, v{X + 4 * c + e}')
            y = 24 + 2 * c
            a(f'v_cvt_pk_bf16_f32 v{y}, v{cb}, v{cb + 1}')
            a(f'v_cvt_pk_bf16_f32 v{y + 1}, v{cb + 2}, v{cb + 3}')
        a.flush_bg()
        a(f's_lshl_b32 s40, s{S_RT}, 2')
        a(f's_add_u32 s40, s40, s{F_WAVE}')
        a('s_mul_i32 s40, s40, 20')
        a(f's_lshr_b32 s41, s{S_CT}, 1')
        a('s_mul_i32 s41, s41, 5')
        a('s_add_u32 s40, s40, s41')
        a('s_lshl_b32 s40, s40, 10')
        a('v_lshrrev_b32 v34, 1, v236')
        srd = f's[{S_O1}:{S_O1 + 3}]'
        a(f's_bitcmp1_b32 s{S_CT}, 0')
        a(f's_cbranch_scc1 {L}_yodd')
        a(f'buffer_store_dwordx4 v[24:27], v236, {srd}, s40 offen{STORE_SC}')
        a(f'buffer_store_dwordx4 v[28:31], v236, {srd}, s40 offen offset:1024{STORE_SC}')
        a(f'buffer_store_dwordx2 v[32:33], v34, {srd}, s40 offen offset:2048{STORE_SC}')
        a(f's_branch {L}_ydone')
        a.label(f'{L}_yodd')
        a(f'buffer_store_dwordx2 v[24:25], v34, {srd}, s40 offen offset:2560{STORE_SC}')
        a('s_add_u32 s41, s40, 3072')
        a(f'buffer_store_dwordx4 v[26:29], v236, {srd}, s41 offen{STORE_SC}')
        a(f'buffer_store_dwordx4 v[30:33], v236, {srd}, s41 offen offset:1024{STORE_SC}')
        a.label(f'{L}_ydone')
        a(f'v_add_f32 v20, v{X}, v{X + 1}')
        a(f'v_add_f32 v21, v{X + 2}, v{X + 3}')
        for e in range(4, 20, 2):
            a(f'v_add_f32 v20, v20, v{X + e}')
            a(f'v_add_f32 v21, v21, v{X + e + 1}')
        a('v_add_f32 v20, v20, v21')
        sum_over_g(a, 20, 21)
        a(f'v_mul_f32 v20, {fhex(1.0 / 80)}, v20')
        a(f'v_sub_f32 v22, v{X}, v20')
        a(f'v_sub_f32 v23, v{X + 1}, v20')
        a('v_mul_f32 v21, v22, v22')
        a('v_mul_f32 v35, v23, v23')
        for e in range(2, 20, 2):
            a(f'v_sub_f32 v22, v{X + e}, v20')
            a(f'v_sub_f32 v23, v{X + e + 1}, v20')
            a('v_fmac_f32 v21, v22, v22')
            a('v_fmac_f32 v35, v23, v23')
        a('v_add_f32 v21, v21, v35')
        sum_over_g(a, 21, 22)
        a(f's_lshl_b32 s41, s{S_RT}, 3')
        a(f's_add_u32 s41, s41, s{S_CT}')
        a('s_lshl_b32 s41, s41, 9')
        a(f's_lshl_b32 s42, s{F_WAVE}, 7')
        a('s_add_u32 s41, s41, s42')
        a('v_lshlrev_b32 v22, 3, v239')
        a('s_mov_b64 exec, 0xffff')
        a(f'buffer_store_dwordx2 v[20:21], v22, s[{S_O3}:{S_O3 + 3}], s41 offen{STORE_SC}')
        a('s_mov_b64 exec, -1')
    else:
        k = 1.0 / LOG2E
        a('s_movk_i32 s41, 1280')
        a('v_mul_lo_u32 v22, v237, s41')
        a(f's_mul_i32 s41, s{S_CT}, 160')
        a('v_lshl_add_u32 v23, v238, 3, s41')
        a('v_add_u32 v22, v22, v23')
        for c in range(5):
            for e in range(4):
                g = V_EP + 20 + 4 * c + e
                a(f'v_mul_f32 v{g}, {fhex(k)}, v{g}')
                a(f'v_fma_f32 v{4 * c + e}, v{g}, v{4 * c + e}, v{F_X2 + 4 * c + e}')
            y = 24 + 2 * c
            a(f'v_cvt_pk_bf16_f32 v{y}, v{4 * c}, v{4 * c + 1}')
            a(f'v_cvt_pk_bf16_f32 v{y + 1}, v{4 * c + 2}, v{4 * c + 3}')
            a(f'buffer_store_dwordx2 v[{y}:{y + 1}], v22, s[{S_O1}:{S_O1 + 3}], 0 offen offset:{32 * c}')


F1_W, F1_SRC, F1_M0, F1_RT4, F1_CT4 = 48, 44, 45, 46, 47


def ffn1_pre(a):
    load_ptr(a, 6, KA_W1)
    a('s_and_b32 s3, s2, 7')
    a('s_lshr_b32 s60, s2, 3')
    a(f's_lshr_b32 s{F1_RT4}, s3, 1')
    a(f's_lshl_b32 s{F1_RT4}, s{F1_RT4}, 2')
    a('s_and_b32 s61, s60, 3')
    a(f's_add_u32 s{F1_RT4}, s{F1_RT4}, s61')
    a(f's_and_b32 s{F1_CT4}, s3, 1')
    a(f's_lshl_b32 s{F1_CT4}, s{F1_CT4}, 3')
    a('s_lshr_b32 s61, s60, 2')
    a(f's_add_u32 s{F1_CT4}, s{F1_CT4}, s61')
    a(f'v_and_b32 v227, 63, v{F_TID}')
    a(f's_cmp_eq_u32 s{F1_CT4}, 15')
    a('s_cselect_b32 s61, 5, 13')
    for j in range(7):
        a(f'v_add_u32 v228, {64 * j}, v227')
        a('v_mul_u32_u24 v229, 4682, v228')
        a('v_lshrrev_b32 v229, 16, v229')
        a(f'v_mul_u32_u24 v{220 + j}, 14, v229')
        a(f'v_sub_u32 v{220 + j}, v228, v{220 + j}')
        a(f'v_min_u32 v{220 + j}, s61, v{220 + j}')
        a('v_mul_u32_u24 v229, 3456, v229')
        a(f'v_lshl_add_u32 v{220 + j}, v{220 + j}, 4, v229')
    a('s_waitcnt lgkmcnt(0)')
    make_srd(a, F1_W, 6, 0, 640 * 3456)
    a(f's_mul_i32 s{F1_SRC}, s{F_WAVE}, {32 * 3456}')
    a(f's_mul_i32 s61, s{F1_CT4}, 224')
    a(f's_add_u32 s{F1_SRC}, s{F1_SRC}, s61')
    a(f's_mul_i32 s{F1_M0}, s{F_WAVE}, 7168')


def ffn1_a_groups(ts_):
    out = []
    for t in ts_:
        for j in range(7):
            out.append([f's_add_u32 m0, s{F1_M0}, {t * 28672 + j * 1024}',
                        f's_add_u32 s61, s{F1_SRC}, {t * 4 * 32 * 3456}',
                        (f'buffer_load_dwordx4 v{220 + j}, s[{F1_W}:{F1_W + 3}], s61 offen lds', ('A', t))])
    return out


def ffn1_a_dma(a, ts_):
    for g in ffn1_a_groups(ts_):
        for x in g:
            if isinstance(x, tuple):
                a(x[0], tag=x[1])
            else:
                a(x)


F1_Y, F1_ST, F1_MD, F1_H = 12, 16, 56, 8


def ffn1_setup(a):
    S_RT4, S_M0, WV = F1_RT4, F1_M0, F_WAVE
    make_srd(a, F1_Y, F_WS, WS_Y, SZ_Y)
    make_srd(a, F1_ST, F_WS, WS_STATS, SZ_STATS)
    make_srd(a, F1_MD, F_WS, WS_MOD, SZ_MOD)
    make_srd(a, F1_H, F_WS, WS_H, SZ_H)
    a(f'v_and_b32 v2, 63, v{F_TID}')
    a('v_and_b32 v236, 15, v2')
    a('v_lshrrev_b32 v237, 4, v2')
    a('v_cmp_eq_u32 vcc, 0, v236')
    a(f'v_mov_b32 v10, {1920 * 4}')
    a(f'v_mov_b32 v11, {2560 * 4}')
    a('v_cndmask_b32 v10, v10, v11, vcc')
    a('v_lshl_add_u32 v10, v237, 4, v10')
    a(f's_lshl_b32 s37, s{WV}, 7')
    a('v_add_u32 v10, s37, v10')
    a('v_cndmask_b32 v11, 0, 1.0, vcc')
    for t in range(5):
        for hh in range(2):
            r = 60 + 8 * t + 4 * hh
            a(f'buffer_load_dwordx4 v[{r}:{r + 3}], v10, s[{F1_MD}:{F1_MD + 3}], 0 offen offset:{512 * t + 64 * hh}{LOAD_SC}')
    a('v_lshlrev_b32 v3, 4, v2')
    a('v_lshlrev_b32 v4, 3, v2')
    for r in range(2):
        a(f's_lshl_b32 s37, s{S_RT4}, 3')
        a(f's_lshl_b32 s38, s{WV}, 1')
        a('s_add_u32 s37, s37, s38')
        a(f's_add_u32 s37, s37, {r}')
        a('s_mul_i32 s37, s37, 20480')
        a(f'v_add_u32 v{240 + r}, s37, v3')
        a(f'v_add_u32 v{234 + r}, s37, v4')
    for t in range(5):
        a(f's_mov_b32 s{36 + t if t < 1 else 39 + t}, {t * 4096}')
    a('v_mov_b32 v242, v3')
    a('v_mov_b32 v233, v4')
    for r in range(2):
        a(f's_lshl_b32 s37, s{WV}, 1')
        a(f's_add_u32 s37, s37, {r}')
        a('s_and_b32 s37, s37, 3')
        a('s_lshl_b32 s37, s37, 7')
        a('v_lshlrev_b32 v5, 10, v237')
        a('v_lshl_add_u32 v5, v236, 3, v5')
        a(f'v_add_u32 v{238 + r}, s37, v5')
    a(f's_lshl_b32 s60, s{S_RT4}, 1')
    a(f's_lshr_b32 s37, s{WV}, 1')
    a('s_add_u32 s60, s60, s37')
    a('s_lshl_b32 s60, s60, 12')
    a('v_lshrrev_b32 v5, 2, v236')
    a('v_lshl_add_u32 v5, v237, 2, v5')
    a('v_mul_u32_u24 v5, 224, v5')
    a('v_and_b32 v6, 3, v236')
    a('v_lshl_add_u32 v230, v6, 3, v5')
    a(f'v_add_u32 v231, {9 * 7168}, v230')
    a(f'v_add_u32 v232, {18 * 7168}, v230')
    a(f'v_add_u32 v228, s{S_M0}, v230')
    a(f'v_add_u32 v229, {3 * 28672}, v228')


def ffn1_phase(a, cfg, wait_cb, stamp, mid_cb):
    L = 'L_ffn1'
    S_Y, S_ST, S_H = F1_Y, F1_ST, F1_H
    S_RT4, S_CT4 = F1_RT4, F1_CT4
    WV = F_WAVE
    UVX = 143360
    UVF = UVX + 3584
    KS = [36, 40, 41, 42, 43]
    for t in range(5):
        r = 60 + 8 * t
        for e in range(8):
            a(f'v_add_f32 v{r + e}, v{r + e}, v11')
        for d in range(4):
            a(f'v_cvt_pk_bf16_f32 v{110 + 4 * t + d}, v{r + 2 * d}, v{r + 2 * d + 1}')
    AF = 160

    def a_reads(base_v, off, par):
        out = []
        for c in range(7):
            for sel in range(2):
                r = AF + par * 28 + c * 4 + 2 * sel
                out.append(f'ds_read_b64_tr_b16 a[{r}:{r + 1}], v{base_v} offset:{off + sel * 3584 + 32 * c}')
        return out

    def a_step(m):
        base = m // 9
        return a_reads(230 + base, (m - 9 * base) * 7168, m & 1)

    UA = 140

    def uv_reads(t):
        return a_reads(228 if t < 3 else 229, (t if t < 3 else t - 3) * 28672, t & 1)
    for x in uv_reads(0):
        a(x)
    for t in range(5):
        nxt = uv_reads(t + 1) if t < 4 else []
        a.wait_regs([f'a[{AF + (t & 1) * 28}:{AF + (t & 1) * 28 + 27}]'])
        for c in range(7):
            d = vr(UA + 4 * c, 4)
            a(m16(d, ar(AF + (t & 1) * 28 + 4 * c, 4), vr(110 + 4 * t, 4), '0' if t == 0 else d))
            for x in nxt[2 * c:2 * c + 2]:
                a(x)
    for x in a_step(0):
        a(x)
    a('v_lshlrev_b32 v5, 6, v236')
    a('v_lshl_add_u32 v5, v237, 4, v5')
    a(f's_mul_i32 s37, s{WV}, 896')
    a(f's_add_u32 s37, s37, {UVX}')
    a('v_add_u32 v5, s37, v5')
    a('v_cmp_gt_u32 vcc, 2, v236')
    a.nop(4)
    a('s_and_saveexec_b64 s[38:39], vcc')
    for c in range(7):
        a(f'ds_write_b128 v5, v[{UA + 4 * c}:{UA + 4 * c + 3}] offset:{128 * c}')
    a('s_mov_b64 exec, s[38:39]')
    a('s_waitcnt lgkmcnt(0)')
    a('s_barrier')
    a(f'v_min_u32 v5, 223, v{F_TID}')
    a('v_lshlrev_b32 v5, 2, v5')
    a(f'v_add_u32 v6, {UVX}, v5')
    for w in range(4):
        a(f'ds_read_b32 v{60 + w}, v6 offset:{896 * w}')
    a('v_add_f32 v60, v60, v61')
    a('v_add_f32 v62, v62, v63')
    a('v_add_f32 v60, v60, v62')
    a(f'v_mul_f32 v60, {fhex(LOG2E)}, v60')
    a(f'ds_write_b32 v6, v60 offset:3584')
    for r in range(56):
        a(f'v_mov_b32 v{r}, 0') if r not in (5, 6) else None
    a('s_waitcnt lgkmcnt(0)')
    stamp('f1uv')
    wait_cb()
    stamp('bar2')

    def b_loads(m):
        out = []
        for r in range(2):
            b = (m * 2 + r) * 4
            if m % 5 == 2:
                for h in range(2):
                    out.append((f'buffer_load_dwordx2 a[{b + 2 * h}:{b + 2 * h + 1}], v{234 + r}, s[{S_Y}:{S_Y + 3}], s{KS[m // 4]} offen '
                                f'offset:{(m & 3) * 1024 + 512 * h}{LOAD_SC}', ('B', m)))
            else:
                out.append((f'buffer_load_dwordx4 a[{b}:{b + 3}], v{240 + r}, s[{S_Y}:{S_Y + 3}], s{KS[m // 4]} offen '
                            f'offset:{(m & 3) * 1024}{LOAD_SC}', ('B', m)))
        return out

    AHEAD = cfg.get('f1_ahead', 8)
    for m in range(AHEAD):
        for t, tag in b_loads(m):
            a(t, tag=tag)
    for r in range(2):
        for e in range(2):
            b = 100 + 4 * r + 2 * e
            a(f'buffer_load_dwordx2 v[{b}:{b + 1}], v{238 + r}, s[{S_ST}:{S_ST + 3}], s60 offen offset:{512 * e}{LOAD_SC}')
    a('v_lshlrev_b32 v5, 4, v237')
    a(f'v_add_u32 v5, {UVF}, v5')
    for c in range(7):
        a(f'ds_read_b128 v[{140 + 4 * c}:{143 + 4 * c}], v5 offset:{128 * c}')
        a(f'ds_read_b128 v[{170 + 4 * c}:{173 + 4 * c}], v5 offset:{128 * c + 64}')
    for r in (5, 6):
        a(f'v_mov_b32 v{r}, 0')
    stamp('f1b')

    for m in range(20):
        a.wait_tag_vm(lambda tg: tg == ('B', m))
        nxt = a_step(m + 1) if m + 1 < 20 else []
        bl = b_loads(m + AHEAD) if m + AHEAD < 20 else []
        a.wait_regs([f'a[{AF + (m & 1) * 28}:{AF + (m & 1) * 28 + 27}]'])
        k = 0
        for c in range(7):
            for r in range(2):
                d = vr((r * 7 + c) * 4, 4)
                bb = (m * 2 + r) * 4
                a(m16(d, ar(AF + (m & 1) * 28 + c * 4, 4), ar(bb, 4), d))
                if bl and k % 3 == 1:
                    t, tag = bl.pop(0)
                    a(t, tag=tag)
                elif nxt:
                    a(nxt.pop(0))
                k += 1
        for x in nxt:
            a(x)
        for t, tag in bl:
            a(t, tag=tag)
    stamp('f1loop')
    mid_cb()
    for r in range(2):
        b = 100 + 4 * r
        a(f'v_add_f32 v78, v{b}, v{b + 2}')
        sum_over_g(a, 78, 80)
        a(f'v_mul_f32 v78, {fhex(0.125)}, v78')
        a(f'v_add_f32 v79, v{b + 1}, v{b + 3}')
        for k in range(2):
            a(f'v_sub_f32 v80, v{b + 2 * k}, v78')
            a('v_mul_f32 v80, v80, v80')
            a(f'v_fmac_f32 v79, {fhex(80.0)}, v80')
        sum_over_g(a, 79, 80)
        a(f'v_mov_b32 v80, {fhex(1e-5)}')
        a(f'v_fmac_f32 v80, {fhex(1.0 / 640)}, v79')
        a('v_rsq_f32 v80, v80')
        a.nop(1)
        a(f'v_mul_f32 v{244 + 2 * r}, {fhex(LOG2E)}, v80')
        a(f'v_mul_f32 v{245 + 2 * r}, v78, v80')
    for c in range(7):
        for r in range(2):
            b = (r * 7 + c) * 4
            T = 60 + 8 * r
            for e in range(4):
                a(f'v_fma_f32 v{T + e}, -v{245 + 2 * r}, v{140 + 4 * c + e}, v{170 + 4 * c + e}')
            for e in range(4):
                a(f'v_fma_f32 v{b + e}, v{244 + 2 * r}, v{b + e}, v{T + e}')
            for e in range(4):
                a(f'v_exp_f32 v{T + e}, -v{b + e}')
            for e in range(4):
                a(f'v_add_f32 v{T + e}, 1.0, v{T + e}')
            for e in range(4):
                a(f'v_rcp_f32 v{T + e}, v{T + e}')
            for e in range(4):
                a(f'v_mul_f32 v{b + e}, v{b + e}, v{T + e}')
            hp = 110 + 14 * r + 2 * c
            a(f'v_cvt_pk_bf16_f32 v{hp}, v{b}, v{b + 1}')
            a(f'v_cvt_pk_bf16_f32 v{hp + 1}, v{b + 2}, v{b + 3}')
    a.flush_bg()
    for r in range(2):
        a(f's_lshl_b32 s37, s{S_RT4}, 3')
        a(f's_lshl_b32 s38, s{WV}, 1')
        a('s_add_u32 s37, s37, s38')
        a(f's_add_u32 s37, s37, {r}')
        a('s_mul_i32 s37, s37, 54')
        a(f's_lshr_b32 s38, s{S_CT4}, 1')
        a('s_mul_i32 s38, s38, 7')
        a('s_add_u32 s37, s37, s38')
        a(f's_lshl_b32 s{40 + r}, s37, 10')
    srd = f's[{S_H}:{S_H + 3}]'
    a(f's_bitcmp1_b32 s{S_CT4}, 0')
    a(f's_cbranch_scc1 {L}_odd')
    for r in range(2):
        hp = 110 + 14 * r
        for k in range(3):
            a(f'buffer_store_dwordx4 v[{hp + 4 * k}:{hp + 4 * k + 3}], v242, {srd}, s{40 + r} offen offset:{1024 * k}{STORE_SC}')
        a(f'buffer_store_dwordx2 v[{hp + 12}:{hp + 13}], v233, {srd}, s{40 + r} offen offset:3072{STORE_SC}')
    a(f's_branch {L}_sdone')
    a.label(f'{L}_odd')
    for r in range(2):
        hp = 110 + 14 * r
        a(f'buffer_store_dwordx2 v[{hp}:{hp + 1}], v233, {srd}, s{40 + r} offen offset:3584{STORE_SC}')
        a(f's_add_u32 s{42 + r}, s{40 + r}, 4096')
        a(f'buffer_store_dwordx4 v[{hp + 2}:{hp + 5}], v242, {srd}, s{42 + r} offen{STORE_SC}')
    a(f's_cmp_eq_u32 s{S_CT4}, 15')
    a(f's_cbranch_scc1 {L}_sdone')
    for r in range(2):
        hp = 110 + 14 * r
        for k in range(1, 3):
            a(f'buffer_store_dwordx4 v[{hp + 2 + 4 * k}:{hp + 5 + 4 * k}], v242, {srd}, s{42 + r} offen offset:{1024 * k}{STORE_SC}')
    a.label(f'{L}_sdone')


def ffn2_a_dma(a, cfg):
    RING = cfg.get('ring_f', 6)
    make_srd(a, 48, F_WS, WS_W2F, SZ_W2F)
    tile_64x80(a)
    a(f'v_and_b32 v227, 63, v{F_TID}')
    a('v_lshlrev_b32 v227, 4, v227')
    a(f's_mul_i32 s60, s{F_WAVE}, 14')
    a(f's_mul_i32 s61, s{F_WAVE}, 40960')
    for c in range(5):
        a(f's_mul_i32 s38, s{S_CT}, 5')
        a(f's_add_u32 s38, s38, {c}')
        a('s_mul_i32 s38, s38, 54')
        a('s_add_u32 s38, s38, s60')
        a(f's_lshl_b32 s{52 + c}, s38, 10')
    a(f's_cmp_eq_u32 s{F_WAVE}, 3')
    a('s_cselect_b32 s57, 0, 1')
    groups = []
    for step in range(RING, 14):
        for c in range(5):
            g = [f's_add_u32 m0, s61, {((step - RING) * 5 + c) * 1024}']
            if step >= 12:
                g += [f's_mul_i32 s58, s57, {step * 1024}', f's_add_u32 s58, s58, s{52 + c}']
            else:
                g += [f's_add_u32 s58, s{52 + c}, {step * 1024}']
            g.append((f'buffer_load_dwordx4 v227, s[48:51], s58 offen{LOAD_SC} lds', 'w2'))
            groups.append(g)
    a.set_bg(groups, 10)
```
